```python
import torch

def _softmax(x, axis=-1):
    return torch.softmax(x, dim=axis)
def _gelu(x):
    return torch.nn.functional.gelu(x, approximate="tanh")
def _silu(x):
    return torch.nn.functional.silu(x)
def _sigmoid(x):
    return torch.sigmoid(x)
def _layernorm(x, axis=-1, eps=1e-5):
    m = x.mean(dim=axis, keepdim=True)
    v = x.var(dim=axis, keepdim=True, unbiased=False)
    return (x - m) / torch.sqrt(v + eps)
def _scatter_add(tgt, idx, src, axis=0):
    return tgt.clone().index_add_(axis, idx, src)
def _segment_sum(src, seg, n):
    out = torch.zeros((n,) + src.shape[1:], dtype=src.dtype)
    return out.index_add_(0, seg, src)
def _pad(x, pw):
    flat = tuple(v for pair in reversed(pw) for v in pair)
    return torch.nn.functional.pad(x, flat)

kernel_name = 'gated_mix__sliding_block__dense_activation_relu__prompt'

def setup_inputs():

    _w = (lambda a: (lambda t: t.to(torch.bfloat16) if t.is_floating_point() else t)(torch.as_tensor(a)))
    def _A_setup():
        B, S, D = 1, 2048, 1024
        return {
            "x": _w((lambda *s: torch.randn(*s, dtype=torch.bfloat16) * 0.05)(B, S, D)),
            "wqkv": _w((lambda *s: torch.randn(*s, dtype=torch.bfloat16) * 0.8)(D, 3 * D)),
            "wo": _w((lambda *s: torch.randn(*s, dtype=torch.bfloat16) * 0.05)(D, D)),
        }
    _A_in = _A_setup()

    def _B_setup():
        B, S, D, Dff = 1, 2048, 1024, 3584
        return {
            "x": _w((lambda *s: torch.randn(*s, dtype=torch.bfloat16) * 0.05)(B, S, D)),
            "w1": _w((lambda *s: torch.randn(*s, dtype=torch.bfloat16) * 0.05)(D, Dff)),
            "w2": _w((lambda *s: torch.randn(*s, dtype=torch.bfloat16) * 0.05)(Dff, D)),
        }
    _B_in = _B_setup()

    return {
        "A_x": _A_in["x"],
        "A_wqkv": _A_in["wqkv"],
        "A_wo": _A_in["wo"],
        "B_x": _B_in["x"],
        "B_w1": _B_in["w1"],
        "B_w2": _B_in["w2"],
        "gate_w": _w((lambda *s: torch.randn(*s, dtype=torch.bfloat16) * 0.05)(1024) * 16.0),
    }

def reference(A_x, A_wqkv, A_wo, B_x, B_w1, B_w2, gate_w):
    def _A_ref(x, wqkv, wo):
        B, S, D = x.shape
        H = 32; Dh = D // H; W = 256
        qkv = (lambda x, *d: x.permute(*d))((x @ wqkv).reshape(B, S, 3, H, Dh), 2, 0, 3, 1, 4)
        q, k, v = qkv[0], qkv[1], qkv[2]
        scores = torch.einsum("bhqd,bhkd->bhqk", q, k) * (Dh ** -0.5)
        idx = torch.arange(S)
        mask = (idx[:, None] - idx[None, :] >= 0) & (idx[:, None] - idx[None, :] < W)
        scores = torch.where(mask[None, None], scores, -1e9)
        p = _softmax(scores, axis=-1)
        o = torch.einsum("bhqk,bhkd->bhqd", p, v)
        return (lambda x, *d: x.permute(*d))(o, 0, 2, 1, 3).reshape(B, S, D) @ wo

    def _B_ref(x, w1, w2):
        h = torch.einsum("bsd,df->bsf", x, w1)
        zero = torch.zeros_like(h)
        h = torch.maximum(h, zero)
        return torch.einsum("bsf,fd->bsd", h, w2)

    x = A_x
    g = _sigmoid((x * gate_w).sum(-1, keepdims=True))
    a = _A_ref(x, A_wqkv, A_wo)
    b = _B_ref(x, B_w1, B_w2)
    return g * a + (1 - g) * b
```

```python
class Asm:
    def __init__(self):
        self.lines = []
    def __call__(self, s):
        for l in s.strip("\n").split("\n"):
            l = l.strip()
            if l:
                self.lines.append("    " + l)
    def label(self, l):
        self.lines.append(l + ":")
    def raw(self, s):
        self.lines.append(s)
    def comment(self, s):
        self.lines.append("    ; " + s)
    def text(self):
        return "\n".join(self.lines) + "\n"

def vr(b, n=1):
    return f"v{b}" if n == 1 else f"v[{b}:{b+n-1}]"
def ar(b, n=1):
    return f"a{b}" if n == 1 else f"a[{b}:{b+n-1}]"
def sr(b, n=1):
    return f"s{b}" if n == 1 else f"s[{b}:{b+n-1}]"

def kernel_begin(a, name):
    a.raw(".text")
    a.raw(f".globl {name}")
    a.raw(".p2align 8")
    a.raw(f".type {name},@function")
    a.label(name)

def kernel_desc(a, name, vgpr, accum, sgpr=102):
    a.raw('.section .rodata,"a"')
    a.raw(".p2align 6")
    a.raw(f".amdhsa_kernel {name}")
    a.raw(f"  .amdhsa_next_free_vgpr {vgpr}")
    a.raw(f"  .amdhsa_next_free_sgpr {sgpr}")
    a.raw(f"  .amdhsa_accum_offset {accum}")
    a.raw("  .amdhsa_group_segment_fixed_size 0")
    a.raw("  .amdhsa_kernarg_size 80")
    a.raw("  .amdhsa_user_sgpr_count 2")
    a.raw("  .amdhsa_user_sgpr_kernarg_segment_ptr 1")
    a.raw("  .amdhsa_system_sgpr_workgroup_id_x 1")
    a.raw(".end_amdhsa_kernel")
```

```python
from asmlib import *
from gemm1 import A2_OFF, Q_OFF, KV_OFF, G_OFF, WS_USED

NEG = 0xf149f2ca
CSC = 0.17677669529663687 * 1.4426950408889634
import struct
def f2u(x): return struct.unpack("<I", struct.pack("<f", x))[0]

S0 = 0; MU = 144; MD = 160; OA = 176; LA = 192; QR = 208; ONES = 224
VL = 228; VKV = 229; VG = 230; VT0 = 232; VT1 = 233; VT2 = 234; VO16 = 235

def gen_attn(a, name="attn_kernel"):
    kernel_begin(a, name)
    a(f"""
    s_cmp_ge_u32 s2, 256
    s_cbranch_scc1 {name}_end
    s_load_dwordx2 s[32:33], s[0:1], 72
    v_lshrrev_b32 v1, 6, v0
    v_and_b32 v{VL}, 63, v0
    s_and_b32 s28, s2, 31
    v_readfirstlane_b32 s20, v1
    s_lshr_b32 s29, s2, 5
    v_lshlrev_b32 v{VO16}, 4, v{VL}
    s_waitcnt lgkmcnt(0)
    s_mov_b32 s12, s32
    s_and_b32 s13, s33, 0xffff
    s_mov_b32 s14, {WS_USED}
    s_mov_b32 s15, 0x20000
    """)
    attn_body(a, name, ldsbase=0)
    a.label(f"{name}_end")
    a("s_endpgm")

def attn_body(a, name, ldsbase):
    a(f"""
    s_lshl_b32 s40, s28, 6
    s_lshl_b32 s41, s29, 3
    s_add_u32 s40, s40, s41
    s_lshl_b32 s42, s20, 2
    s_add_u32 s42, s42, s40          ; + 4w
    s_lshl_b32 s42, s42, 12
    s_add_u32 s42, s42, {KV_OFF - 8*4096}
    s_lshl_b32 s43, s20, 14
    s_add_u32 s43, s43, {ldsbase}
    s_lshl_b32 s44, s29, 2
    s_add_u32 s44, s44, s20
    s_cmp_lt_u32 s44, 2
    s_cbranch_scc1 {name}_nokv
    """)
    for b in range(4):
        a(f"s_add_u32 m0, s43, {b*4096}")
        a("s_nop 0")
        for p in range(4):
            a(f"buffer_load_dwordx4 v{VO16}, s[12:15], s42 offen offset:{p*1024} lds")
        a("s_add_u32 s42, s42, 4096")
    a.label(f"{name}_nokv")
    a(f"""
    s_lshl_b32 s45, s20, 1
    s_add_u32 s46, s40, s45
    s_lshl_b32 s46, s46, 11
    s_add_u32 s46, s46, {Q_OFF}
    buffer_load_dwordx4 {vr(QR,4)}, v{VO16}, s[12:15], s46 offen
    buffer_load_dwordx4 {vr(QR+4,4)}, v{VO16}, s[12:15], s46 offen offset:1024
    buffer_load_dwordx4 {vr(QR+8,4)}, v{VO16}, s[12:15], s46 offen offset:2048
    buffer_load_dwordx4 {vr(QR+12,4)}, v{VO16}, s[12:15], s46 offen offset:3072
    s_add_u32 s47, s41, s45
    v_and_b32 v{VT0}, 31, v{VL}
    v_lshlrev_b32 v{VT1}, 2, v{VT0}
    s_lshl_b32 s46, s47, 7
    s_add_u32 s46, s46, {G_OFF}
    buffer_load_dword v{VG}, v{VT1}, s[12:15], s46 offen
    buffer_load_dword v{VG+1}, v{VT1}, s[12:15], s46 offen offset:128
    v_lshrrev_b32 v{VT1}, 5, v{VL}
    v_lshlrev_b32 v{VT1}, 2, v{VT1}
    v_sub_u32 v{VT1}, v{VT0}, v{VT1}     ; q - 4h
    v_mov_b32 v{VT2}, {hex(NEG)}
    """)
    for r in range(16):
        kk = 8 * (r >> 2) + (r & 3)
        a(f"""
        v_cmp_gt_i32 vcc, {kk}, v{VT1}
        s_nop 1
        v_cndmask_b32 v{MU+r}, v{VT2}, 0, vcc
        v_cndmask_b32 v{MD+r}, 0, v{VT2}, vcc
        """)
    for r in range(4):
        a(f"v_mov_b32 v{ONES+r}, 0x3f803f80")
    a(f"""
    s_lshl_b32 s48, s45, 12
    s_add_u32 s48, s48, {ldsbase}
    v_add_u32 v{VKV}, s48, v{VO16}
    s_mov_b32 s49, {hex(f2u(CSC))}
    s_waitcnt vmcnt(0)
    s_barrier
    """)
    for u in range(2):
        attn_unit(a, name, u)

def attn_unit(a, name, u):
    Q0 = vr(QR + 8 * u, 4); Q1 = vr(QR + 8 * u + 4, 4)
    uo = u * 4096
    a(f"""
    s_sub_i32 s50, 8, s47
    s_max_i32 s50, s50, 0
    """)
    def kst(b): return OA + 8 * (b % 4)
    def rdk(b):
        a(f"ds_read_b128 {vr(kst(b),4)}, v{VKV} offset:{uo + b*4096}")
        a(f"ds_read_b128 {vr(kst(b)+4,4)}, v{VKV} offset:{uo + b*4096 + 1024}")
    for b in range(3):
        rdk(b)
    for b in range(9):
        if b + 3 < 9:
            rdk(b + 3)
            a("s_waitcnt lgkmcnt(6)")
        else:
            a(f"s_waitcnt lgkmcnt({2*(8-b)})")
        S = vr(S0 + 16 * b, 16)
        C = vr(MU, 16) if b == 0 else (vr(MD, 16) if b == 8 else "0")
        if b < 8:
            a(f"s_cmp_lt_u32 {b}, s50")
            a(f"s_cbranch_scc1 {name}_abs_{u}_{b}")
        a(f"v_mfma_f32_32x32x16_bf16 {S}, {vr(kst(b),4)}, {Q0}, {C}")
        a(f"v_mfma_f32_32x32x16_bf16 {S}, {vr(kst(b)+4,4)}, {Q1}, {S}")
        if b < 8:
            a(f"s_branch {name}_absd_{u}_{b}")
            a.label(f"{name}_abs_{u}_{b}")
            for r in range(16):
                a(f"v_mov_b32 v{S0+16*b+r}, v{VT2}")
            a.label(f"{name}_absd_{u}_{b}")
    a("s_nop 15")
    a(f"v_max3_f32 v{VT0}, v0, v1, v2")
    r = 3
    while r + 1 < 144:
        a(f"v_max3_f32 v{VT0}, v{VT0}, v{r}, v{r+1}")
        r += 2
    a(f"v_max_f32 v{VT0}, v{VT0}, v143")
    a(f"""
    v_mov_b32 v{VT1}, v{VT0}
    s_nop 1
    v_permlane32_swap_b32 v{VT0}, v{VT1}
    s_nop 1
    v_max_f32 v{VT0}, v{VT0}, v{VT1}
    v_mul_f32 v{VT0}, s49, v{VT0}
    """)
    for r in range(32):
        a(f"v_mov_b32 v{OA+r}, 0")
    for b in range(9):
        s = S0 + 16 * b
        for r in range(16):
            a(f"v_fma_f32 v{s+r}, v{s+r}, s49, -v{VT0}")
        for r in range(16):
            a(f"v_exp_f32 v{s+r}, v{s+r}")
        a("s_nop 0")
        for q in range(8):
            a(f"v_cvt_pk_bf16_f32 v{s+q}, v{s+2*q}, v{s+2*q+1}")
        a(f"ds_read_b128 {vr(s+8,4)}, v{VKV} offset:{uo + b*4096 + 2048}")
        a(f"ds_read_b128 {vr(s+12,4)}, v{VKV} offset:{uo + b*4096 + 3072}")
        if b > 0:
            pv(a, name, u, b - 1, 2)
    pv(a, name, u, 8, 0)
    a("s_nop 15")
    a(f"""
    v_rcp_f32 v{VT1}, v{LA}
    s_nop 0
    v_mul_f32 v{VT1}, v{VT1}, v{VG+u}
    """)
    for r in range(16):
        a(f"v_mul_f32 v{OA+r}, v{OA+r}, v{VT1}")
    for q in range(8):
        a(f"v_cvt_pk_bf16_f32 v{OA+q}, v{OA+2*q}, v{OA+2*q+1}")
    a(f"""
    s_lshl_b32 s51, s47, 2
    s_lshr_b32 s52, s28, 3
    s_add_u32 s51, s51, s52
    s_mul_i32 s51, s51, 72
    s_and_b32 s52, s28, 7
    s_lshl_b32 s52, s52, 1
    s_add_u32 s51, s51, s52
    s_add_u32 s51, s51, 56
    s_lshl_b32 s51, s51, 10
    buffer_store_dwordx4 {vr(OA,4)}, v{VO16}, s[12:15], s51 offen
    buffer_store_dwordx4 {vr(OA+4,4)}, v{VO16}, s[12:15], s51 offen offset:1024
    s_add_u32 s47, s47, 1
    s_nop 1
    """)

def pv(a, name, u, b, lg):
    s = S0 + 16 * b
    a(f"s_waitcnt lgkmcnt({lg})")
    if b < 8:
        a(f"s_cmp_lt_u32 {b}, s50")
        a(f"s_cbranch_scc1 {name}_pvs_{u}_{b}")
    else:
        a("s_nop 1")
    O = vr(OA, 16); Ls = vr(LA, 16)
    a(f"v_mfma_f32_32x32x16_bf16 {O}, {vr(s+8,4)}, {vr(s,4)}, {O}")
    a(f"v_mfma_f32_32x32x16_bf16 {Ls}, {vr(ONES,4)}, {vr(s,4)}, {Ls}")
    a(f"v_mfma_f32_32x32x16_bf16 {O}, {vr(s+12,4)}, {vr(s+4,4)}, {O}")
    a(f"v_mfma_f32_32x32x16_bf16 {Ls}, {vr(ONES,4)}, {vr(s+4,4)}, {Ls}")
    if b < 8:
        a.label(f"{name}_pvs_{u}_{b}")
```

```python
from asmlib import *

A2_OFF = 0
Q_OFF  = 0x1200000
KV_OFF = 0x1600000
G_OFF  = 0x1E00000
WS_USED = 0x1E02000

NSLOT = 5

def gen_gemm1(a, name="gemm1_kernel"):
    kernel_begin(a, name)
    a(f"""
    s_cmp_ge_u32 s2, 256
    s_cbranch_scc1 {name}_end
    s_load_dwordx4 s[16:19], s[0:1], 0
    s_load_dwordx2 s[30:31], s[0:1], 32
    s_load_dwordx2 s[32:33], s[0:1], 72
    s_load_dwordx2 s[34:35], s[0:1], 48
    v_lshrrev_b32 v1, 6, v0
    v_and_b32 v224, 63, v0
    s_and_b32 s36, s2, 7
    v_readfirstlane_b32 s20, v1
    s_lshr_b32 s37, s2, 3
    s_and_b32 s28, s36, 1
    s_lshl_b32 s28, s28, 2
    s_and_b32 s38, s37, 3
    s_add_u32 s28, s28, s38
    s_lshr_b32 s37, s37, 2
    s_lshr_b32 s29, s36, 1
    s_lshl_b32 s29, s29, 2
    s_lshr_b32 s38, s37, 1
    s_add_u32 s29, s29, s38
    s_and_b32 s39, s37, 1
    """)
    L = 224
    a(f"""
    v_lshrrev_b32 v241, 2, v{L}
    v_lshlrev_b32 v241, 11, v241
    v_and_b32 v242, 3, v{L}
    v_bfe_u32 v243, v{L}, 4, 2
    v_xor_b32 v242, v242, v243
    v_lshl_add_u32 v241, v242, 4, v241
    s_lshl_b32 s40, s28, 8
    s_lshl_b32 s41, s20, 6
    s_add_u32 s40, s40, s41
    s_lshl_b32 s40, s40, 11
    v_add_u32 v225, s40, v241
    v_add_u32 v226, {16*2048-1024}, v225
    v_add_u32 v227, {2*(16*2048-1024)}, v225
    v_add_u32 v228, {3*(16*2048-1024)}, v225
    v_and_b32 v241, 31, v{L}
    v_lshlrev_b32 v241, 6, v241
    v_bfe_u32 v242, v{L}, 2, 2
    v_lshrrev_b32 v243, 5, v{L}
    v_xor_b32 v242, v242, v243
    v_lshl_add_u32 v241, v242, 4, v241
    s_lshl_b32 s25, s20, 12
    v_add_u32 v233, s25, v241
    v_xor_b32 v234, 32, v233
    s_waitcnt lgkmcnt(0)
    s_mov_b32 s4, s16
    s_and_b32 s5, s17, 0xffff
    s_mov_b32 s6, {2048*1024*2}
    s_mov_b32 s7, 0x20000
    s_mov_b32 s12, s32
    s_and_b32 s13, s33, 0xffff
    s_mov_b32 s14, {WS_USED}
    s_mov_b32 s15, 0x20000
    s_cmp_eq_u32 s39, 1
    s_cbranch_scc1 {name}_qkv
    """)
    gen_path(a, name, qkv=False)
    a.label(f"{name}_qkv")
    gen_path(a, name, qkv=True)
    a.label(f"{name}_end")
    a("s_endpgm")


def gen_path(a, name, qkv):
    L = 224
    NJ = 6 if qkv else 7
    pitch = NJ * 64
    gp = 6144 if qkv else 7168
    nch = NJ * 4
    SLOT = 16384 + 32 * pitch
    npw = 3 if qkv else 4
    per_it = 4 + npw
    tag = "q" if qkv else "h"
    magic = {24: 2731, 28: 2341}[nch]
    if qkv:
        a(f"""
        s_mov_b32 s8, s18
        s_and_b32 s9, s19, 0xffff
        s_mov_b32 s10, {1024*3072*2}
        s_mov_b32 s11, 0x20000
        """)
    else:
        a(f"""
        s_mov_b32 s8, s30
        s_and_b32 s9, s31, 0xffff
        s_mov_b32 s10, {1024*3584*2}
        s_mov_b32 s11, 0x20000
        """)
    a(f"s_mov_b32 s42, {magic}")
    a(f"s_lshl_b32 s43, s20, 3")
    for p in range(npw):
        d = 229 + p
        a(f"""
        v_add_u32 v241, {64*p}, v{L}
        v_mul_lo_u32 v242, v241, s42
        v_lshrrev_b32 v242, 16, v242
        v_mul_u32_u24 v243, {nch}, v242
        v_sub_u32 v243, v241, v243
        v_add_u32 v242, s43, v242
        """)
        if qkv:
            a(f"""
            v_lshrrev_b32 v244, 2, v243
            v_bfe_u32 v245, v242, 1, 1
            v_xor_b32 v244, v244, v245
            v_lshrrev_b32 v245, 1, v244
            v_lshlrev_b32 v245, 11, v245
            v_and_b32 v244, 1, v244
            v_lshl_add_u32 v245, v244, 6, v245
            v_and_b32 v243, 3, v243
            v_lshl_add_u32 v245, v243, 4, v245
            s_lshl_b32 s44, s29, 7
            """)
        else:
            a(f"""
            v_lshlrev_b32 v245, 4, v243
            s_mul_i32 s44, s29, 448
            """)
        a(f"""
        v_mul_u32_u24 v242, {gp}, v242
        v_add3_u32 v{d}, v242, v245, s44
        """)
        if p:
            a(f"v_subrev_u32 v{d}, {1024*p}, v{d}")
    a(f"""
    v_lshrrev_b32 v241, 5, v{L}
    v_lshlrev_b32 v241, 3, v241
    v_bfe_u32 v242, v{L}, 2, 2
    v_add_u32 v241, v241, v242
    v_mul_u32_u24 v241, {pitch}, v241
    v_bfe_u32 v243, v{L}, 4, 1
    v_lshl_add_u32 v241, v243, 5, v241
    v_and_b32 v243, 3, v{L}
    v_lshl_add_u32 v241, v243, 3, v241
    v_add_u32 v235, 16384, v241
    """)
    if qkv:
        a(f"""
        v_bfe_u32 v243, v{L}, 3, 1
        v_lshlrev_b32 v243, 6, v243
        v_sub_u32 v236, v235, v243
        v_add_u32 v235, v235, v243
        """)
    a(f"""
    s_mul_i32 s26, s20, {8*pitch}
    s_add_u32 s26, s26, 16384
    s_mov_b32 s23, 0
    s_mov_b32 s24, 0
    """)

    def dma_x(p):
        return f"buffer_load_dwordx4 v{225+p}, s[4:7], s23 offen offset:{1024*p} lds"
    def dma_w(p):
        ins = f"buffer_load_dwordx4 v{229+p}, s[8:11], s24 offen offset:{1024*p} lds"
        if (not qkv) and p == 3:
            return "s_mov_b32 exec_hi, 0\n" + ins + "\ns_mov_b32 exec_hi, -1"
        return ins

    for s in range(NSLOT):
        a(f"s_add_u32 m0, s25, {s*SLOT}")
        a("s_nop 0")
        for p in range(4):
            a(dma_x(p))
        a(f"s_add_u32 m0, s26, {s*SLOT}")
        a("s_add_u32 s23, s23, 64")
        for p in range(npw):
            a(dma_w(p))
        a(f"s_add_u32 s24, s24, {32*gp}")
    for r in range(NJ * 32):
        a(f"v_mov_b32 v{r}, 0")
    FS = 8 + 4 * NJ
    def xf(st, i): return st * FS + 4 * i
    def wf(st, j): return st * FS + 8 + 4 * j
    def rd_x(st, s, i):
        return f"ds_read_b128 {ar(xf(st,i),4)}, v{237+s} offset:{i*2048}"
    def rd_w(st, s, j, t):
        base = 239 + (j & 1 if qkv else 0)
        return f"ds_read_b64_tr_b16 {ar(wf(st,j)+2*t,2)}, v{base} offset:{(16*s+4*t)*pitch + j*64}"
    def reads(st, s):
        r = [rd_x(st, s, 0), rd_x(st, s, 1)]
        for j in range(NJ):
            r += [rd_w(st, s, j, 0), rd_w(st, s, j, 1)]
        return r
    def mfma(st, j, i):
        acc = vr((j * 2 + i) * 16, 16)
        W = ar(wf(st, j), 4); X = ar(xf(st, i), 4)
        if qkv and j >= 4:
            return f"v_mfma_f32_32x32x16_bf16 {acc}, {X}, {W}, {acc}"
        return f"v_mfma_f32_32x32x16_bf16 {acc}, {W}, {X}, {acc}"

    a(f"""
    s_mov_b32 s21, 0
    s_mov_b32 s22, {SLOT}
    s_mov_b32 s27, 0
    v_mov_b32 v237, v233
    v_mov_b32 v238, v234
    v_mov_b32 v239, v235
    """)
    if qkv:
        a("v_mov_b32 v240, v236")
    a(f"s_waitcnt vmcnt({(NSLOT-1)*per_it})")
    a("s_barrier")
    for r in reads(0, 0):
        a(r)
    a("s_waitcnt lgkmcnt(0)")
    a.raw(".p2align 6")
    a.label(f"{name}_loop_{tag}")
    NM = 2 * NJ
    nrd = 2 + 2 * NJ
    fill = [[] for _ in range(NM)]
    rs = reads(1, 1)
    for n, r in enumerate(rs):
        fill[n // 2].append(r)
    g = nrd // 2
    fill[g].append(f"s_waitcnt lgkmcnt({nrd-2})")
    fill[g].append("s_add_u32 m0, s21, s25")
    for p in range(4):
        fill[min(g + 1 + p, NM - 1)].append(dma_x(p))
    fill[NM - 1].append("v_add_u32 v237, s22, v233")
    fill[NM - 1].append("v_add_u32 v239, s22, v235")
    if qkv:
        fill[NM - 1].append("v_add_u32 v240, s22, v236")
    for m in range(NM):
        a(mfma(0, m // 2, m % 2))
        for f in fill[m]:
            a(f)
    a(f"s_waitcnt vmcnt({(NSLOT-2)*per_it + 4}) lgkmcnt(0)")
    a("s_barrier")
    fill = [[] for _ in range(NM)]
    rs = reads(0, 0)
    for n, r in enumerate(rs):
        fill[n // 2].append(r)
    fill[g].append("v_add_u32 v238, s22, v234")
    fill[g].append("s_add_u32 m0, s21, s26")
    for p in range(npw):
        fill[min(g + 1 + p, NM - 1)].append(dma_w(p))
    fill[NM - 1] += [
        "s_add_u32 s23, s23, 64",
        f"s_add_u32 s24, s24, {32*gp}",
        "s_mov_b32 s21, s22",
        f"s_add_u32 s22, s22, {SLOT}",
        f"s_cmp_eq_u32 s22, {NSLOT*SLOT}",
        "s_cselect_b32 s22, 0, s22",
        "s_add_u32 s27, s27, 1",
        f"s_cmp_lt_u32 s27, {32-NSLOT}",
        "s_cselect_b32 s6, s6, 0",
        "s_cselect_b32 s10, s10, 0",
        "s_cmp_lt_u32 s27, 32",
    ]
    for m in range(NM):
        a(mfma(1, m // 2, m % 2))
        for f in fill[m]:
            a(f)
    a("s_waitcnt lgkmcnt(0)")
    a(f"s_cbranch_scc1 {name}_loop_{tag}")
    a("s_nop 15")
    a(f"v_lshlrev_b32 v241, 4, v{L}")
    a("""
    s_lshl_b32 s40, s28, 3
    s_lshl_b32 s41, s20, 1
    s_add_u32 s40, s40, s41
    """)
    if not qkv:
        a(f"""
        s_mul_i32 s41, s40, 288
        s_lshr_b32 s42, s29, 2
        s_mul_i32 s42, s42, 72
        s_add_u32 s41, s41, s42
        s_and_b32 s42, s29, 3
        s_mul_i32 s42, s42, 14
        s_add_u32 s41, s41, s42
        s_lshl_b32 s41, s41, 10
        """)
    else:
        a(f"""
        s_lshl_b32 s43, s29, 7
        s_add_u32 s43, s43, s40
        s_lshl_b32 s41, s43, 11
        s_add_u32 s41, s41, {Q_OFF}
        s_lshl_b32 s42, s43, 12
        s_add_u32 s42, s42, {KV_OFF}
        """)
    for j in range(NJ):
        for i in range(2):
            r0 = (j * 2 + i) * 16
            for q in range(8):
                a(f"v_cvt_pk_bf16_f32 v{r0+q}, v{r0+2*q}, v{r0+2*q+1}")
            if not qkv:
                for q in range(8):
                    a(f"v_pk_max_i16 v{r0+q}, v{r0+q}, 0")
                off = i * 288 * 1024 + 2 * j * 1024
                a(f"s_add_u32 s44, s41, {off}")
            else:
                hd = j & 1
                if j < 2:
                    off = (hd * 64 + i) * 2048
                    a(f"s_add_u32 s44, s41, {off}")
                else:
                    off = (hd * 64 + i) * 4096 + (2048 if j >= 4 else 0)
                    a(f"s_add_u32 s44, s42, {off}")
            a(f"buffer_store_dwordx4 {vr(r0,4)}, v241, s[12:15], s44 offen")
            a(f"buffer_store_dwordx4 {vr(r0+4,4)}, v241, s[12:15], s44 offen offset:1024")
    if qkv:
        gen_gate(a)
    a("s_endpgm")


def gen_gate(a):
    L = 224
    a(f"""
    s_mov_b32 s6, {2048*1024*2}
    s_mov_b32 s8, s34
    s_and_b32 s9, s35, 0xffff
    s_mov_b32 s10, 2048
    s_mov_b32 s11, 0x20000
    s_lshl_b32 s40, s28, 8
    s_lshl_b32 s41, s29, 4
    s_add_u32 s40, s40, s41
    s_lshl_b32 s41, s20, 2
    s_add_u32 s40, s40, s41
    s_lshl_b32 s41, s40, 11
    v_lshlrev_b32 v242, 5, v{L}
    s_waitcnt vmcnt(0)
    buffer_load_dwordx4 v[0:3], v242, s[8:11], 0 offen
    buffer_load_dwordx4 v[4:7], v242, s[8:11], 0 offen offset:16
    """)
    for r in range(4):
        a(f"buffer_load_dwordx4 {vr(32+8*r,4)}, v242, s[4:7], s41 offen offset:{(r%2)*2048}")
        a(f"buffer_load_dwordx4 {vr(36+8*r,4)}, v242, s[4:7], s41 offen offset:{(r%2)*2048+16}")
        if r == 1:
            a("s_add_u32 s41, s41, 4096")
    a("s_waitcnt vmcnt(0)")
    for d in range(8):
        a(f"v_lshlrev_b32 v{8+2*d}, 16, v{d}")
        a(f"v_and_b32 v{9+2*d}, 0xffff0000, v{d}")
    for r in range(4):
        acc = 64 + r
        a(f"v_mov_b32 v{acc}, 0")
        for d in range(8):
            x = 32 + 8 * r + d
            a(f"""
            v_lshlrev_b32 v70, 16, v{x}
            v_and_b32 v71, 0xffff0000, v{x}
            v_mul_f32 v70, v70, v{8+2*d}
            v_mul_f32 v71, v71, v{9+2*d}
            v_cvt_pk_bf16_f32 v72, v70, v71
            v_lshlrev_b32 v70, 16, v72
            v_and_b32 v71, 0xffff0000, v72
            v_add_f32 v{acc}, v{acc}, v70
            v_add_f32 v{acc}, v{acc}, v71
            """)
    for sh in (8, 4, 2, 1):
        a("s_nop 1")
        for r in range(4):
            a(f"v_add_f32_dpp v{64+r}, v{64+r}, v{64+r} row_ror:{sh} row_mask:0xf bank_mask:0xf")
    a("s_nop 1")
    a("v_mov_b32 v80, 0")
    for r in range(4):
        for q in range(4):
            a(f"v_readlane_b32 s{44+q}, v{64+r}, {16*q}")
        a(f"""
        s_nop 1
        v_mov_b32 v81, s44
        v_add_f32 v81, s45, v81
        v_add_f32 v81, s46, v81
        v_add_f32 v81, s47, v81
        v_cmp_eq_u32 vcc, {r}, v{L}
        s_nop 1
        v_cndmask_b32 v80, v80, v81, vcc
        """)
    a(f"""
    v_cvt_pk_bf16_f32 v80, v80, v80
    v_lshlrev_b32 v80, 16, v80
    v_mul_f32 v80, 0xbfb8aa3b, v80
    v_exp_f32 v80, v80
    s_nop 0
    v_add_f32 v80, 1.0, v80
    v_rcp_f32 v80, v80
    s_nop 0
    v_cvt_pk_bf16_f32 v80, v80, v80
    v_lshlrev_b32 v80, 16, v80
    v_lshlrev_b32 v81, 2, v{L}
    s_lshl_b32 s40, s40, 2
    s_add_u32 s40, s40, {G_OFF}
    v_cmp_gt_u32 vcc, 4, v{L}
    s_and_saveexec_b64 s[44:45], vcc
    buffer_store_dword v80, v81, s[12:15], s40 offen
    s_mov_b64 exec, s[44:45]
    """)
```

```python
from asmlib import *
from gemm1 import A2_OFF, Q_OFF, KV_OFF, G_OFF, WS_USED

AR = 128; WF = 224
VL = 240; VA = 241
VW = 245
VR0 = 247; VR1 = 248
VG = 249
VT = 253
RING = 6
WRING_BYTES = RING * 2048
RED_OFF = 4 * WRING_BYTES

def gen_gemm2(a, name="gemm2_kernel"):
    kernel_begin(a, name)
    a(f"""
    s_cmp_ge_u32 s2, 256
    s_cbranch_scc1 {name}_end
    s_load_dwordx2 s[16:17], s[0:1], 16
    s_load_dwordx2 s[18:19], s[0:1], 40
    s_load_dwordx2 s[30:31], s[0:1], 56
    s_load_dwordx2 s[32:33], s[0:1], 72
    v_lshrrev_b32 v1, 6, v0
    v_and_b32 v{VL}, 63, v0
    s_nop 0
    v_readfirstlane_b32 s20, v1
    s_waitcnt lgkmcnt(0)
    s_mov_b32 s12, s32
    s_and_b32 s13, s33, 0xffff
    s_mov_b32 s14, {WS_USED}
    s_mov_b32 s15, 0x20000
    """)
    gemm2_body(a, name)
    a.label(f"{name}_end")
    a("s_endpgm")

def gemm2_body(a, name):
    a(f"""
    s_and_b32 s36, s2, 7
    s_lshr_b32 s37, s2, 3
    s_lshr_b32 s28, s36, 1
    s_lshl_b32 s28, s28, 2
    s_and_b32 s38, s37, 3
    s_add_u32 s28, s28, s38          ; mt
    s_and_b32 s29, s36, 1
    s_lshl_b32 s29, s29, 3
    s_lshr_b32 s38, s37, 2
    s_add_u32 s29, s29, s38          ; nt
    s_mov_b32 s4, s32
    s_and_b32 s5, s33, 0xffff
    s_mov_b32 s6, {Q_OFF}
    s_mov_b32 s7, 0x20000
    s_mov_b32 s8, s18
    s_and_b32 s9, s19, 0xffff
    s_mov_b32 s10, {3584*1024*2}
    s_mov_b32 s11, 0x20000
    s_and_b32 s17, s17, 0xffff
    v_lshlrev_b32 v{VT}, 4, v{VL}
    v_and_b32 v{VT+1}, 31, v{VL}
    v_lshlrev_b32 v{VT+1}, 2, v{VT+1}
    s_lshl_b32 s41, s28, 9
    s_add_u32 s41, s41, {G_OFF}
    """)
    for im in range(4):
        a(f"""
        s_add_u32 s40, s20, {im}
        s_and_b32 s40, s40, 3
        s_mul_i32 s42, s40, {288*1024}
        v_add_u32 v{VA+im}, s42, v{VT}
        s_lshl_b32 s42, s40, 7
        s_add_u32 s42, s42, s41
        buffer_load_dword v{VG+im}, v{VT+1}, s[12:15], s42 offen
        """)
    a(f"""
    s_lshl_b32 s23, s28, 4
    s_add_u32 s23, s23, s20
    s_mul_i32 s23, s23, {72*1024}
    s_mul_i32 s24, s20, {16*56*2048}
    s_mul_i32 s25, s20, {16*16*2048}
    s_mul_i32 s26, s20, {WRING_BYTES}
    v_lshrrev_b32 v{VT}, 3, v{VL}
    v_lshlrev_b32 v{VT}, 11, v{VT}
    v_and_b32 v{VT+1}, 7, v{VL}
    v_bfe_u32 v{VT+2}, v{VL}, 4, 1
    v_lshlrev_b32 v{VT+2}, 2, v{VT+2}
    v_xor_b32 v{VT+1}, v{VT+1}, v{VT+2}
    v_lshl_add_u32 v{VT}, v{VT+1}, 4, v{VT}
    s_lshl_b32 s40, s29, 7
    v_add_u32 v{VW}, s40, v{VT}
    v_add_u32 v{VW+1}, {8*2048-1024}, v{VW}
    v_lshrrev_b32 v{VT}, 5, v{VL}
    v_lshlrev_b32 v{VT}, 2, v{VT}
    v_bfe_u32 v{VT+1}, v{VL}, 2, 2
    v_add_u32 v{VT}, v{VT}, v{VT+1}
    v_lshlrev_b32 v{VT}, 7, v{VT}
    v_bfe_u32 v{VT+1}, v{VL}, 3, 1
    v_lshl_add_u32 v{VT}, v{VT+1}, 6, v{VT}
    v_bfe_u32 v{VT+1}, v{VL}, 4, 1
    v_lshl_add_u32 v{VT}, v{VT+1}, 5, v{VT}
    v_and_b32 v{VT+1}, 3, v{VL}
    v_lshl_add_u32 v{VT}, v{VT+1}, 3, v{VT}
    v_add_u32 v{VR0}, s26, v{VT}
    v_xor_b32 v{VR1}, 64, v{VR0}
    """)
    def issue_w(pos):
        a(f"s_add_u32 m0, s26, {pos*2048}")
        a("s_nop 0")
        a(f"buffer_load_dwordx4 v{VW}, s[8:11], s24 offen lds")
        a(f"buffer_load_dwordx4 v{VW+1}, s[8:11], s24 offen offset:1024 lds")
        a(f"s_add_u32 s24, s24, {16*2048}")
    def ld_a(pos, im):
        return f"buffer_load_dwordx4 {vr(AR+16*pos+4*im,4)}, v{VA+im}, s[4:7], s23 offen"
    def rd_w(st, pos):
        out = []
        for jn in range(2):
            for t in range(2):
                out.append(f"ds_read_b64_tr_b16 {vr(WF+8*st+4*jn+2*t,2)}, v{VR0+jn} offset:{pos*2048+t*1024}")
        return out
    for pos in range(RING):
        issue_w(pos)
        for im in range(4):
            a(ld_a(pos, im))
        a("s_add_u32 s23, s23, 1024")
    for r in range(128):
        a(f"v_mov_b32 v{r}, 0")
    a(f"s_waitcnt vmcnt({RING*6})")
    for im in range(4):
        a(f"""
        v_sub_f32 v{VG+im}, 1.0, v{VG+im}
        v_cvt_pk_bf16_f32 v{VG+im}, v{VG+im}, v{VG+im}
        v_lshlrev_b32 v{VG+im}, 16, v{VG+im}
        """)
    a(f"s_waitcnt vmcnt({RING*6-2})")
    for r in rd_w(0, 0):
        a(r)
    a("s_mov_b32 s27, 0")
    a.raw(".p2align 6")
    a.label(f"{name}_loop")
    for pos in range(RING):
        st = pos & 1
        if pos == 2:
            a(f"""
            s_cmp_eq_u32 s27, 8
            s_cselect_b32 s8, s16, s8
            s_cselect_b32 s9, s17, s9
            s_cselect_b32 s10, {1024*1024*2}, s10
            s_cselect_b32 s24, s25, s24
            s_cmp_eq_u32 s27, 9
            s_cbranch_scc1 {name}_scale
            """)
            a.label(f"{name}_scale_ret")
        a(f"s_waitcnt vmcnt({(RING-2)*6+4}) lgkmcnt(0)")
        for r in rd_w(st ^ 1, (pos + 1) % RING):
            a(r)
        a(f"s_add_u32 m0, s26, {pos*2048}")
        k = 0
        for im in range(4):
            for jn in range(2):
                acc = vr((im * 2 + jn) * 16, 16)
                a(f"v_mfma_f32_32x32x16_bf16 {acc}, {vr(WF+8*st+4*jn,4)}, {vr(AR+16*pos+4*im,4)}, {acc}")
                if k == 0:
                    a(f"buffer_load_dwordx4 v{VW}, s[8:11], s24 offen lds")
                if k == 1:
                    a(f"buffer_load_dwordx4 v{VW+1}, s[8:11], s24 offen offset:1024 lds")
                    a(f"s_add_u32 s24, s24, {16*2048}")
                if k == 3 or k == 5:
                    a(ld_a(pos, im - 1))
                if k == 7:
                    a(ld_a(pos, 2))
                    a(ld_a(pos, 3))
                    a("s_add_u32 s23, s23, 1024")
                k += 1
    a(f"""
    s_add_u32 s27, s27, 1
    s_cmp_lt_u32 s27, 11
    s_cselect_b32 s6, s6, 0
    s_cselect_b32 s10, s10, 0
    s_cmp_lt_u32 s27, 12
    s_cbranch_scc1 {name}_loop
    s_branch {name}_fin
    """)
    a.label(f"{name}_scale")
    a("s_nop 15")
    for im in range(4):
        for r in range(32):
            a(f"v_mul_f32 v{im*32+r}, v{im*32+r}, v{VG+im}")
    a(f"s_branch {name}_scale_ret")
    a.label(f"{name}_fin")
    a("s_nop 15")
    a(f"v_lshlrev_b32 v{VT}, 4, v{VL}")
    for im in range(1, 4):
        a(f"""
        s_add_u32 s40, s20, {im}
        s_and_b32 s40, s40, 3
        s_mul_i32 s40, s40, {3*8192}
        s_add_u32 s40, s40, {RED_OFF + (im-1)*8192}
        v_add_u32 v{VT+1}, s40, v{VT}
        """)
        for q in range(8):
            a(f"ds_write_b128 v{VT+1}, {vr(im*32+4*q,4)} offset:{q*1024}")
    a(f"""
    s_mul_i32 s40, s20, {3*8192}
    s_add_u32 s40, s40, {RED_OFF}
    v_add_u32 v{VT+1}, s40, v{VT}
    s_waitcnt vmcnt(0) lgkmcnt(0)
    s_barrier
    """)
    for s in range(3):
        for q in range(8):
            a(f"ds_read_b128 {vr(32+s*32+4*q,4)}, v{VT+1} offset:{s*8192+q*1024}")
    for s in range(3):
        a(f"s_waitcnt lgkmcnt({min(15,(2-s)*8)})")
        for r in range(32):
            a(f"v_add_f32 v{r}, v{r}, v{32+s*32+r}")
    a(f"""
    s_mov_b32 s4, s30
    s_and_b32 s5, s31, 0xffff
    s_mov_b32 s6, {2048*1024*2}
    s_mov_b32 s7, 0x20000
    v_and_b32 v{VT}, 31, v{VL}
    v_lshlrev_b32 v{VT}, 11, v{VT}
    v_lshrrev_b32 v{VT+1}, 5, v{VL}
    v_lshl_add_u32 v{VT}, v{VT+1}, 4, v{VT}
    s_lshl_b32 s40, s28, 7
    s_lshl_b32 s41, s20, 5
    s_add_u32 s40, s40, s41
    s_lshl_b32 s40, s40, 11
    s_lshl_b32 s41, s29, 7
    s_add_u32 s40, s40, s41
    """)
    for jn in range(2):
        r0 = jn * 16
        for q in range(8):
            a(f"v_cvt_pk_bf16_f32 v{r0+q}, v{r0+2*q}, v{r0+2*q+1}")
        a("s_nop 1")
        for qq in range(2):
            a(f"v_permlane32_swap_b32 v{r0+4*qq}, v{r0+4*qq+2}")
            a(f"v_permlane32_swap_b32 v{r0+4*qq+1}, v{r0+4*qq+3}")
        for qq in range(2):
            a(f"buffer_store_dwordx4 {vr(r0+4*qq,4)}, v{VT}, s[4:7], s40 offen offset:{jn*64+qq*32}")
```

```python
import sys
from asmlib import *
import gemm1, attn, gemm2

HDR = open("gated_mix__sliding_block__dense_activation_relu__prompt.s.ref").read().split("; Override launch")[0]

def build():
    a = Asm()
    a.raw(HDR.rstrip("\n"))
    a.raw("; @launch kernel=gemm1_kernel grid=(256,1,1) block=(256,1,1) lds=153600")
    a.raw("; @launch kernel=attn_kernel grid=(256,1,1) block=(256,1,1) lds=65536")
    a.raw(f"; @launch kernel=gemm2_kernel grid=(256,1,1) block=(256,1,1) lds={gemm2.RED_OFF + 12*8192}")
    a.raw('.amdgcn_target "amdgcn-amd-amdhsa--gfx950"')
    gemm1.gen_gemm1(a)
    attn.gen_attn(a)
    gemm2.gen_gemm2(a)
    kernel_desc(a, "gemm1_kernel", 256 + 72, 256)
    kernel_desc(a, "attn_kernel", 256, 256)
    kernel_desc(a, "gemm2_kernel", 256, 256)
    return a.text()

if __name__ == "__main__":
    out = sys.argv[1] if len(sys.argv) > 1 else "gated_mix__sliding_block__dense_activation_relu__prompt.s"
    open(out, "w").write(build())
```

```python
import re
REG = re.compile(r'^(-?\|?)([vas])(\d+)$|^(-?\|?)([vas])\[(\d+):(\d+)\]$')
TRANS = ('v_exp_', 'v_log_', 'v_rcp_', 'v_rsq_', 'v_sqrt_', 'v_sin_', 'v_cos_')

def regs(op):
    op = op.strip().rstrip('|')
    if op in ('vcc',): return {('s', 106), ('s', 107)}
    if op == 'vcc_lo': return {('s', 106)}
    if op == 'vcc_hi': return {('s', 107)}
    if op == 'm0': return {('m', 0)}
    if op in ('exec', 'exec_lo', 'exec_hi'): return {('e', 0)}
    m = REG.match(op)
    if not m: return set()
    if m.group(2): return {(m.group(2), int(m.group(3)))}
    return {(m.group(5), i) for i in range(int(m.group(6)), int(m.group(7)) + 1)}

def parse(line):
    s = line.split(';')[0].strip()
    if not s or s.endswith(':') or s.startswith('.'): return None
    parts = s.split(None, 1)
    mn = parts[0]
    ops = []
    if len(parts) > 1:
        for tok in parts[1].split(','):
            tok = tok.strip()
            sub = tok.split()
            ops.append(sub[0] if sub else '')
            ops_mod = sub[1:]
        mods = parts[1]
    else:
        mods = ''
    return mn, ops, mods

class Ins: pass

def analyze(line):
    p = parse(line)
    if p is None: return None
    mn, ops, mods = p
    I = Ins(); I.mn = mn; I.rd = set(); I.wr = set(); I.kind = 'other'; I.states = 1
    I.A = I.B = I.C = set(); I.sdata = set()
    R = [regs(o) for o in ops]
    if mn.startswith('v_mfma'):
        I.kind = 'mfma'; I.wr = R[0]; I.A = R[1]; I.B = R[2]; I.C = R[3]; I.rd = R[1] | R[2] | R[3]
        I.passes = 4 if '16x16x32' in mn else 8
    elif mn.startswith('v_'):
        I.kind = 'valu'
        if mn.startswith('v_permlane') and 'swap' in mn:
            I.wr = R[0] | R[1]; I.rd = R[0] | R[1]; I.perm = True
        elif mn.startswith('v_cmp'):
            I.wr = R[0]; I.rd = set().union(*R[1:])
        elif mn.startswith('v_writelane'):
            I.wr = R[0]; I.rd = set().union(*R)
        elif mn == 'v_nop':
            pass
        else:
            I.wr = R[0]; I.rd = set().union(*R[1:]) if len(R) > 1 else set()
            if mn.startswith('v_cndmask') and len(R) == 3: I.rd |= regs('vcc')
            if mn.startswith(('v_fmac', 'v_pk_fmac', 'v_dot2c')): I.rd |= R[0]
        I.trans = mn.startswith(TRANS)
        I.dpp = ('row_' in mods or 'quad_perm' in mods or '_dpp' in mn)
    elif mn.startswith(('buffer_', 'global_')):
        I.kind = 'vmem'
        lds = re.search(r'\blds\b', mods) is not None
        if 'load' in mn and not lds:
            I.wr = R[0]; I.rd = set().union(*R[1:])
        elif 'load' in mn:
            I.rd = set().union(*R) | {('m', 0)}; I.lds = True
        else:
            I.rd = set().union(*R)
            if 'x3' in mn or 'x4' in mn:
                I.sdata = R[0] if mn.startswith('buffer_') else R[1]
    elif mn.startswith('ds_'):
        I.kind = 'ds'
        if 'read' in mn: I.wr = R[0]; I.rd = set().union(*R[1:])
        else: I.rd = set().union(*R)
    elif mn.startswith('s_'):
        I.kind = 'salu'
        if mn == 's_nop': I.states = int(ops[0]) + 1
        elif mn.startswith(('s_cmp', 's_waitcnt', 's_barrier', 's_branch', 's_cbranch', 's_endpgm', 's_sleep', 's_setprio')):
            I.rd = set().union(*R) if R else set()
        else:
            I.wr = R[0] if R else set(); I.rd = set().union(*R[1:]) if len(R) > 1 else set()
    return I

def need(P, I):
    n = 0
    vec = lambda s: {r for r in s if r[0] in 'va'}
    sc = lambda s: {r for r in s if r[0] == 's'}
    if P.kind == 'mfma':
        d = {4: 8, 8: 12}[P.passes]
        if I.kind == 'mfma':
            if P.wr & (I.A | I.B): n = max(n, d)
            if P.wr & I.C and not (P.wr == I.C and P.passes == I.passes): n = max(n, d - 2)
            if P.wr & I.wr and not (P.wr == I.C): n = max(n, d)
        elif I.kind in ('valu', 'vmem', 'ds'):
            if P.wr & (I.rd | I.wr): n = max(n, d)
            if I.kind == 'valu' and P.C & I.wr: n = max(n, {4: 3, 8: 7}[P.passes])
    elif P.kind == 'valu':
        if I.kind == 'mfma' and vec(P.wr) & I.rd: n = max(n, 2)
        if I.kind == 'valu':
            if getattr(I, 'perm', False) and vec(P.wr) & I.rd: n = max(n, 2)
            if I.dpp and vec(P.wr) & I.rd: n = max(n, 2)
            if I.mn.startswith(('v_readlane', 'v_readfirstlane')) and vec(P.wr) & I.rd: n = max(n, 1)
            if P.trans and not I.trans and vec(P.wr) & I.rd: n = max(n, 1)
            if sc(P.wr) & I.rd:
                n = max(n, 4 if I.mn.startswith(('v_readlane', 'v_writelane')) else 2)
            if getattr(P, 'perm', False) and vec(P.wr) & I.rd: n = max(n, 1)
        if I.kind == 'vmem' and sc(P.wr) & I.rd: n = max(n, 5)
        if I.kind == 'salu' and sc(P.wr) & I.rd: n = max(n, 1)
    elif P.kind == 'vmem':
        if P.sdata & I.wr: n = max(n, 2 if I.kind == 'valu' else 1)
    elif P.kind == 'salu':
        if ('m', 0) in P.wr and getattr(I, 'lds', False): n = max(n, 1)
    return n

def fix(lines, verbose=False):
    out = []
    hist = []
    t = 0
    added = 0
    for ln in lines:
        I = analyze(ln)
        if I is None:
            out.append(ln); continue
        req = 0
        for (P, tp) in hist:
            gap = t - tp
            nd = need(P, I)
            if nd > gap: req = max(req, nd - gap)
        if req:
            out.append(f"    s_nop {req-1}")
            t += req; added += 1
        out.append(ln)
        t += I.states
        hist.append((I, t))
        hist = [(P, tp) for (P, tp) in hist if t - tp < 16]
    if verbose: print("hazard nops added:", added)
    return out
```

```python
import sys, struct
from asmlib import *
import hazard

A2_OFF = 0
KV_OFF = 0x1200000
PX_OFF = 0x1A00000
G_OFF  = 0x2200000
KVF_OFF = 0x2204000
PF_OFF  = 0x220C000
HF_OFF  = 0x222C000
OF_OFF  = 0x222C400
WS_USED = 0x2230000
DIAG_OFF = 0x2400000
MT_STRIDE = 144 * 1024

SLOT = 30720; NSLOT = 5
KB = 98304; VB = KB + 32768
NEG = 0xf149f2ca
CSC = 0.17677669529663687 * 1.4426950408889634
def f2u(x): return struct.unpack("<I", struct.pack("<f", x))[0]

class Opt:
    diag = False
    stop = None
    pf2 = True
O = Opt()

VL = 208; VXD = 209; VWD = 213; VXB = 217; VHB = 218; VQ0B = 219; VQ1B = 220
VXR = 221; VHR = 222; VQ0R = 223; VQ1R = 224
VG = 225; VOG = 229; VL16 = 233; VT = 234
VPOLL = 254; VST = 255
MFMA = "v_mfma_f32_16x16x32_bf16"

nst = [0]
def stamp(a, n):
    if not O.diag: return
    a(f"""
    s_memtime s[96:97]
    s_memrealtime s[98:99]
    s_waitcnt lgkmcnt(0)
    v_writelane_b32 v{VST}, s96, {2*n}
    v_writelane_b32 v{VST}, s98, {2*n+1}
    """)

def dump(a):
    if not O.diag: return
    a(f"""
    s_mov_b32 s14, 0x4000000
    s_lshl_b32 s40, s2, 2
    s_add_u32 s40, s40, s20
    s_lshl_b32 s40, s40, 8
    s_add_u32 s40, s40, {DIAG_OFF}
    v_lshlrev_b32 v{VT}, 2, v{VL}
    buffer_store_dword v{VST}, v{VT}, s[12:15], s40 offen
    """)

def srd(a, d, lo, nrec):
    a(f"""
    s_mov_b32 s{d}, s{lo}
    s_and_b32 s{d+1}, s{lo+1}, 0xffff
    s_mov_b32 s{d+2}, {nrec}
    s_mov_b32 s{d+3}, 0x20000
    """)

def emit_gaps(a, mf, fill):
    for m, ins in enumerate(mf):
        a(ins)
        for f in fill[m]:
            a(f)

def spin(a, name, tag, srdn, soff, vaddr, want, ret, cmp="v_cmp_ne_u32"):
    a.label(f"{name}_spin_{tag}")
    a("s_mov_b32 s93, 0")
    a.label(f"{name}_spinl_{tag}")
    a(f"""
    buffer_load_dword v{VPOLL}, v{vaddr}, s[{srdn}:{srdn+3}], {soff} offen sc1
    s_add_u32 s93, s93, 1
    s_waitcnt vmcnt(0)
    {cmp} vcc, {want}, v{VPOLL}
    s_cmp_gt_u32 s93, 0x40000
    s_cbranch_scc1 {ret}
    s_nop 1
    s_cbranch_vccnz {name}_spinl_{tag}
    s_branch {ret}
    """)

def xf(st, i): return st * 68 + 4 * i
def wf(st, t): return st * 68 + 16 + 4 * t
def acc1(t, m): return (t * 4 + m) * 4
SEC = {0: 1, 1: 1, 2: 2, 3: 2, 4: 0, 5: 0}

def reads1(st):
    r = [f"ds_read_b128 {ar(xf(st,i),4)}, v{VXR} offset:{1024*i}" for i in range(4)]
    for t in range(13):
        for h in range(2):
            if t < 6:
                r.append(f"ds_read_b64_tr_b16 {ar(wf(st,t)+2*h,2)}, v{VQ0R + (t&1)} offset:{SEC[t]*1024 + h*512}")
            else:
                r.append(f"ds_read_b64_tr_b16 {ar(wf(st,t)+2*h,2)}, v{VHR} offset:{h*1792 + (t-6)*32}")
    return r

def mfmas1(st, czero=False):
    out = []
    for t in range(13):
        for m in range(4):
            D = vr(acc1(t, m), 4); W = ar(wf(st, t), 4); X = ar(xf(st, m), 4)
            C = "0" if czero else D
            if t in (2, 3): out.append(f"{MFMA} {D}, {X}, {W}, {C}")
            else: out.append(f"{MFMA} {D}, {W}, {X}, {C}")
    return out

def dma1(buf):
    g = []
    g.append([f"s_add_u32 m0, s31, {buf}"])
    for p in range(4):
        g.append([f"buffer_load_dwordx4 v{VXD+p}, s[4:7], s23 offen offset:{1024*p} lds"])
    g[-1].append("s_add_u32 s23, s23, 64")
    g.append([f"s_add_u32 m0, s32, {buf}"])
    for p in range(3):
        g.append([f"buffer_load_dwordx4 v{VWD+p}, s[8:11], s24 offen offset:{1024*p} lds"])
    g[-1].append("s_add_u32 s24, s24, s25")
    g.append(["s_mov_b64 exec, s[34:35]",
              f"buffer_load_dwordx4 v{VWD+3}, s[16:19], s26 offen offset:3072 lds",
              "s_mov_b64 exec, -1",
              "s_add_u32 s26, s26, s27"])
    return g

def step1(a, st, rd=True, bufs=(), czero=False, wait=None, nxt=None, post=(), extra=None, bar_at=45):
    mf = mfmas1(st, czero)
    fill = [[] for _ in mf]
    if rd:
        for n, r in enumerate(reads1(st ^ 1)):
            fill[n].append(r)
    groups = []
    for b in bufs: groups += dma1(b)
    if groups:
        loads = []
        cur = []
        for g in groups:
            cur += g
            if any("buffer_" in x for x in g):
                loads.append(cur); cur = []
        n = len(loads)
        span = bar_at - 3
        for i, l in enumerate(loads):
            pos = 2 + (i * span) // n
            if l[0].startswith("s_add_u32 m0"):
                fill[pos - 1].append(l[0]); l = l[1:]
            fill[pos] += l
    if extra:
        for pos, ins in extra: fill[pos].append(ins)
    if wait is not None:
        fill[bar_at].append(wait)
        fill[bar_at].append("s_barrier")
    if nxt is not None:
        for i, (cur, base) in enumerate(((VXR, VXB), (VHR, VHB), (VQ0R, VQ0B), (VQ1R, VQ1B))):
            fill[bar_at + 1 + i // 2].append(f"v_add_u32 v{cur}, {nxt}, v{base}")
    for i, p in enumerate(post):
        fill[min(51, bar_at + 3 + i // 2)].append(p)
    emit_gaps(a, mf, fill)

def prologue(a, name):
    a(f"""
    s_cmp_ge_u32 s2, 256
    s_cbranch_scc1 {name}_end
    s_load_dwordx16 s[64:79], s[0:1], 0
    s_load_dwordx4 s[80:83], s[0:1], 64
    v_lshrrev_b32 v1, 6, v0
    v_and_b32 v{VL}, 63, v0
    s_and_b32 s40, s2, 7
    v_readfirstlane_b32 s20, v1
    s_lshr_b32 s41, s2, 3
    s_and_b32 s28, s40, 1
    s_lshl_b32 s28, s28, 2
    s_and_b32 s42, s41, 3
    s_add_u32 s28, s28, s42          ; rb
    s_lshr_b32 s29, s40, 1
    s_lshl_b32 s29, s29, 3
    s_lshr_b32 s42, s41, 2
    s_add_u32 s29, s29, s42          ; j
    """)
    if O.diag: a(f"v_mov_b32 v{VST}, 0")
    stamp(a, 0)
    T = VT
    a(f"""
    v_lshlrev_b32 v{VL16}, 4, v{VL}
    v_lshrrev_b32 v{T}, 2, v{VL}
    v_lshlrev_b32 v{T}, 11, v{T}
    v_and_b32 v{T+1}, 3, v{VL}
    v_bfe_u32 v{T+2}, v{VL}, 5, 1
    v_lshlrev_b32 v{T+2}, 1, v{T+2}
    v_xor_b32 v{T+1}, v{T+1}, v{T+2}
    v_lshl_add_u32 v{T}, v{T+1}, 4, v{T}
    s_lshl_b32 s40, s28, 8
    s_lshl_b32 s41, s20, 6
    s_add_u32 s40, s40, s41
    s_lshl_b32 s40, s40, 11
    v_add_u32 v{VXD}, s40, v{T}
    v_add_u32 v{VXD+1}, {16*2048-1024}, v{VXD}
    v_add_u32 v{VXD+2}, {2*(16*2048-1024)}, v{VXD}
    v_add_u32 v{VXD+3}, {3*(16*2048-1024)}, v{VXD}
    s_lshl_b32 s31, s20, 12
    s_mul_i32 s32, s20, 3584
    s_add_u32 s32, s32, 16384
    s_mov_b32 s23, 0
    s_mov_b32 s24, 0
    s_mov_b32 s26, 0
    s_mov_b32 s35, 0
    s_cmp_ge_u32 s20, 2
    s_cbranch_scc1 {name}_setq
    """)
    a(f"""
    s_mul_i32 s41, s20, 224
    s_mul_i32 s42, s29, 224
    s_movk_i32 s43, 4682
    """)
    for p in range(4):
        a(f"""
        s_add_u32 s44, s41, {64*p}
        v_add_u32 v{T}, s44, v{VL}
        v_mul_u32_u24 v{T+1}, s43, v{T}
        v_lshrrev_b32 v{T+1}, 16, v{T+1}        ; rho
        v_mul_u32_u24 v{T+2}, 14, v{T+1}
        v_sub_u32 v{T+2}, v{T}, v{T+2}          ; chunk
        v_and_b32 v{T+3}, 0x13, v{T+1}
        v_bfe_u32 v{T+4}, v{T+1}, 2, 1
        v_lshl_add_u32 v{T+3}, v{T+4}, 3, v{T+3}
        v_bfe_u32 v{T+4}, v{T+1}, 3, 1
        v_lshl_add_u32 v{T+3}, v{T+4}, 2, v{T+3}   ; k
        v_mul_u32_u24 v{T+3}, 7168, v{T+3}
        v_lshl_add_u32 v{T+3}, v{T+2}, 4, v{T+3}
        s_sub_u32 s44, s42, {1024*p}
        v_add_u32 v{VWD+p}, s44, v{T+3}
        """)
    a(f"""
    s_mov_b32 s25, {32*7168}
    s_mov_b32 s27, {32*7168}
    s_mov_b32 s34, -1
    s_mov_b32 s50, {1024*3584*2}
    s_mov_b32 s51, {7*32*7168}
    s_waitcnt lgkmcnt(0)
    """)
    srd(a, 8, 72, 1024*3584*2)
    srd(a, 16, 72, 1024*3584*2)
    a(f"s_branch {name}_setdone")
    a.label(f"{name}_setq")
    a(f"""
    v_lshrrev_b32 v{T+1}, 2, v{VL}
    v_and_b32 v{T+3}, 3, v{T+1}
    v_bfe_u32 v{T+4}, v{T+1}, 2, 1
    v_lshl_add_u32 v{T+3}, v{T+4}, 3, v{T+3}
    v_bfe_u32 v{T+5}, v{T+1}, 3, 1
    v_lshl_add_u32 v{T+3}, v{T+5}, 2, v{T+3}   ; k low
    v_mul_u32_u24 v{T+3}, 6144, v{T+3}
    v_and_b32 v{T+2}, 3, v{VL}
    v_lshlrev_b32 v{T+4}, 1, v{T+4}
    v_xor_b32 v{T+2}, v{T+2}, v{T+4}
    v_lshl_add_u32 v{T+3}, v{T+2}, 4, v{T+3}
    s_sub_u32 s41, s20, 2
    s_mul_i32 s41, s41, {16*6144}
    s_lshl_b32 s42, s29, 6
    s_add_u32 s41, s41, s42
    v_add_u32 v{VWD}, s41, v{T+3}
    v_add_u32 v{VWD+1}, 1024, v{VWD}
    v_add_u32 v{VWD+2}, 2048, v{VWD}
    v_lshlrev_b32 v{VWD+3}, 7, v{VL}
    s_mov_b32 s25, {32*6144}
    s_waitcnt lgkmcnt(0)
    """)
    srd(a, 8, 66, 1024*3072*2)
    a(f"""
    s_cmp_eq_u32 s20, 2
    s_cselect_b32 s16, s74, s68
    s_cselect_b32 s17, s75, s69
    s_cselect_b32 s34, 0x1ff, 7
    s_cselect_b32 s41, 9, 3
    s_cselect_b32 s50, {7 if O.pf2 else 0}, {2 if O.pf2 else 0}
    s_lshl_b32 s50, s50, 20
    s_and_b32 s17, s17, 0xffff
    s_mov_b32 s18, 0
    s_mov_b32 s19, 0x20000
    s_lshl_b32 s27, s41, 15
    s_lshl_b32 s41, s41, 7
    s_mul_i32 s51, s2, s41
    """)
    a.label(f"{name}_setdone")
    srd(a, 4, 64, 2048*1024*2)
    for g in dma1(0):
        for x in g: a(x)
    srd(a, 12, 82, WS_USED)
    srd(a, 36, 76, 2048)
    a(f"""
    v_lshlrev_b32 v{T}, 5, v{VL}
    s_lshl_b32 s40, s28, 8
    s_lshl_b32 s41, s29, 3
    s_add_u32 s40, s40, s41
    s_lshl_b32 s41, s20, 1
    s_add_u32 s40, s40, s41          ; row0
    s_lshl_b32 s41, s40, 11
    buffer_load_dwordx4 v[0:3], v{T}, s[36:39], 0 offen
    buffer_load_dwordx4 v[4:7], v{T}, s[36:39], 0 offen offset:16
    buffer_load_dwordx4 v[8:11], v{T}, s[4:7], s41 offen
    buffer_load_dwordx4 v[12:15], v{T}, s[4:7], s41 offen offset:16
    buffer_load_dwordx4 v[16:19], v{T}, s[4:7], s41 offen offset:2048
    buffer_load_dwordx4 v[20:23], v{T}, s[4:7], s41 offen offset:2064
    """)
    for s in (1, 2):
        for g in dma1(s * SLOT):
            for x in g: a(x)
    a(f"""
    v_and_b32 v{T}, 15, v{VL}
    v_lshlrev_b32 v{T+1}, 6, v{T}
    v_lshrrev_b32 v{T+2}, 4, v{VL}           ; G
    v_bfe_u32 v{T+3}, v{VL}, 3, 1
    v_lshlrev_b32 v{T+3}, 1, v{T+3}
    v_xor_b32 v{T+3}, v{T+3}, v{T+2}
    v_lshl_add_u32 v{T+1}, v{T+3}, 4, v{T+1}
    v_add_u32 v{VXB}, s31, v{T+1}
    v_bfe_u32 v{T+3}, v{VL}, 2, 2            ; i>>2
    v_bfe_u32 v{T+4}, v{VL}, 4, 1            ; G&1
    v_lshl_add_u32 v{T+3}, v{T+4}, 2, v{T+3} ; (G&1)*4 + (i>>2)
    v_lshrrev_b32 v{T+5}, 5, v{VL}           ; G>>1
    v_and_b32 v{T+6}, 3, v{VL}
    v_lshlrev_b32 v{T+6}, 3, v{T+6}          ; (i&3)*8
    v_lshl_add_u32 v{T+7}, v{T+5}, 4, v{T+3}
    v_mul_u32_u24 v{T+7}, 224, v{T+7}
    v_add_u32 v{VHB}, v{T+7}, v{T+6}
    v_add_u32 v{VHB}, 16384, v{VHB}
    v_mul_u32_u24 v{T+7}, 3584, v{T+5}
    v_lshl_add_u32 v{T+7}, v{T+3}, 6, v{T+7}
    v_lshl_add_u32 v{T+7}, v{T+4}, 5, v{T+7}
    v_add_u32 v{T+7}, v{T+7}, v{T+6}
    v_add_u32 v{VQ0B}, {16384+7168}, v{T+7}
    v_xor_b32 v{VQ1B}, 32, v{VQ0B}
    v_mov_b32 v{VXR}, v{VXB}
    v_mov_b32 v{VHR}, v{VHB}
    v_mov_b32 v{VQ0R}, v{VQ0B}
    v_mov_b32 v{VQ1R}, v{VQ1B}
    v_and_b32 v{T+19}, 7, v{VL}
    v_lshlrev_b32 v{T+19}, 5, v{T+19}
    """)
    stamp(a, 1)
    a("s_waitcnt vmcnt(16)")
    stamp(a, 2)
    for r in range(4): a(f"v_mov_b32 v{44+r}, 0")
    for d in range(8):
        a(f"v_lshlrev_b32 v24, 16, v{d}")
        a(f"v_and_b32 v25, 0xffff0000, v{d}")
        for r in range(2):
            x = 8 + 8 * r + d; t = 26 + 4 * r
            a(f"""
            v_lshlrev_b32 v{t}, 16, v{x}
            v_and_b32 v{t+1}, 0xffff0000, v{x}
            v_pk_mul_f32 v[{t}:{t+1}], v[{t}:{t+1}], v[24:25]
            v_cvt_pk_bf16_f32 v{t+2}, v{t}, v{t+1}
            v_lshlrev_b32 v{t}, 16, v{t+2}
            v_and_b32 v{t+1}, 0xffff0000, v{t+2}
            v_pk_add_f32 v[{44+2*r}:{45+2*r}], v[{44+2*r}:{45+2*r}], v[{t}:{t+1}]
            """)
    a(f"""
    v_add_f32 v44, v44, v45
    v_add_f32 v46, v46, v47
    v_permlane32_swap_b32 v44, v46
    v_add_f32 v44, v44, v46
    v_mov_b32 v45, v44
    v_permlane16_swap_b32 v44, v45
    v_add_f32 v44, v44, v45
    """)
    for sh in (8, 4, 2, 1):
        a(f"v_add_f32_dpp v44, v44, v44 row_ror:{sh} row_mask:0xf bank_mask:0xf")
    a(f"""
    v_cvt_pk_bf16_f32 v44, v44, v44
    v_lshlrev_b32 v44, 16, v44
    v_mul_f32 v44, 0xbfb8aa3b, v44
    v_exp_f32 v44, v44
    v_add_f32 v44, 1.0, v44
    v_rcp_f32 v44, v44
    v_cvt_pk_bf16_f32 v44, v44, v44
    v_lshlrev_b32 v44, 16, v44
    s_lshl_b32 s40, s40, 2
    s_add_u32 s40, s40, {G_OFF}
    v_mov_b32 v45, s40
    s_add_u32 s40, s40, 4
    v_writelane_b32 v45, s40, 32
    s_lshl_b32 s41, s2, 2
    s_add_u32 s41, s41, s20
    s_lshl_b32 s41, s41, 7
    s_add_u32 s41, s41, {PF_OFF}
    v_writelane_b32 v45, s41, 1
    s_lshl_b32 s42, s28, 5
    s_add_u32 s42, s42, s29          ; rb*32+j
    s_lshl_b32 s43, s42, 7
    s_add_u32 s43, s43, {KVF_OFF}
    s_lshl_b32 s44, s42, 2
    s_add_u32 s45, s44, {OF_OFF}
    s_add_u32 s44, s44, {HF_OFF}
    s_cmp_eq_u32 s20, 1
    s_cselect_b32 s46, s44, s43
    s_cmp_eq_u32 s20, 2
    s_cselect_b32 s46, s45, s46
    v_writelane_b32 v45, s46, 2
    v_writelane_b32 v44, 0, 1
    v_writelane_b32 v44, 0, 2
    s_mov_b32 exec_lo, 7
    s_mov_b32 exec_hi, 1
    buffer_store_dword v44, v45, s[12:15], 0 offen sc1
    s_mov_b64 exec, -1
    s_lshl_b32 s63, s42, 15
    s_add_u32 s63, s63, {KV_OFF}
    """)
    srd(a, 36, 80, 256)
    a("""
    s_mov_b32 s57, s43
    s_mov_b32 s58, s44
    s_mov_b32 s59, s45
    """)
    stamp(a, 3)
    a("s_waitcnt vmcnt(17)")
    a("s_barrier")
    for r in reads1(0): a(r)
    for (cur, base) in ((VXR, VXB), (VHR, VHB), (VQ0R, VQ0B), (VQ1R, VQ1B)):
        a(f"v_add_u32 v{cur}, {SLOT}, v{base}")
    a("s_waitcnt vmcnt(9) lgkmcnt(0)")
    a("s_barrier")
    stamp(a, 4)

PF_START = 8
EV_SIG = 10; EV_POLL = 24

def phase1(a, name):
    prologue(a, name)
    step1(a, 0, bufs=(3*SLOT, 4*SLOT), czero=True, wait="s_waitcnt vmcnt(17) lgkmcnt(0)", nxt=2*SLOT)
    step1(a, 1, bufs=(0, SLOT), wait="s_waitcnt vmcnt(24) lgkmcnt(0)", nxt=3*SLOT,
          post=[f"s_mov_b32 s21, {2*SLOT}", f"s_mov_b32 s22, {4*SLOT}", "s_mov_b32 s30, 2", f"s_mov_b32 s33, {EV_SIG}",
                f"s_mov_b32 s47, {3*SLOT}", "s_mov_b32 s18, s50", "s_mov_b32 s26, s51"])
    a.raw(".p2align 6")
    a.label(f"{name}_loop1")
    upd = ["s_mov_b32 s21, s47", "s_mov_b32 s47, s22", f"s_add_u32 s22, s22, {SLOT}", f"s_cmp_eq_u32 s22, {NSLOT*SLOT}",
           "s_cselect_b32 s22, 0, s22", "s_add_u32 s30, s30, 1", "s_cmp_lt_u32 s30, 27", "s_cselect_b32 s6, s6, 0"]
    step1(a, 0, bufs=("s21",), wait="s_waitcnt vmcnt(24) lgkmcnt(0)", nxt="s22", post=upd)
    step1(a, 1, bufs=("s21",), wait="s_waitcnt vmcnt(24) lgkmcnt(0)", nxt="s22",
          post=upd + ["s_cmp_eq_u32 s30, s33", f"s_cbranch_scc1 {name}_ev1"])
    a.label(f"{name}_ev1ret")
    a("s_cmp_lt_u32 s30, 30")
    a(f"s_cbranch_scc1 {name}_loop1")
    stamp(a, 5)
    T = VT
    ex = [(31, f"v_cmp_ne_u32 vcc, 32, v{VPOLL}"),
          (32, f"v_and_b32 v{T}, 15, v{VL}"), (32, f"v_lshlrev_b32 v{T}, 2, v{T}"),
          (33, "s_lshl_b32 s40, s28, 2"), (33, "s_add_u32 s40, s40, s20"),
          (34, "s_lshl_b32 s40, s40, 8"), (34, f"s_add_u32 s40, s40, {G_OFF}"),
          (35, f"s_cbranch_vccnz {name}_spin_g"), (35, f"{name}_spin_g_ret:")]
    for m in range(4):
        ex.append((36 + 2 * m, f"buffer_load_dword v{VG+m}, v{T}, s[12:15], s40 offen offset:{64*m} sc1"))
    step1(a, 0, wait="s_waitcnt vmcnt(4) lgkmcnt(0)", extra=ex)
    step1(a, 1, rd=False, extra=p2_setup_fill())
    stamp(a, 6)

def events1(a, name):
    T = VT
    a.label(f"{name}_ev1")
    a(f"""
    s_cmp_eq_u32 s33, {EV_SIG}
    s_cbranch_scc0 {name}_ev1b
    s_mov_b32 s33, {EV_POLL}
    s_cmp_eq_u32 s20, 0
    s_cbranch_scc0 {name}_ev1ret
    v_mov_b32 v{T}, 1
    v_mov_b32 v{T+1}, 0
    s_lshl_b32 s40, s28, 5
    s_mov_b64 exec, 1
    buffer_atomic_add v{T}, v{T+1}, s[36:39], s40 offen sc1
    s_mov_b64 exec, -1
    s_branch {name}_ev1ret
    """)
    a.label(f"{name}_ev1b")
    a(f"""
    s_mov_b32 s33, 999
    buffer_load_dword v{VPOLL}, v{T+19}, s[36:39], 0 offen sc1
    s_branch {name}_ev1ret
    """)
    spin(a, name, "g", 36, "0", T + 19, 32, f"{name}_spin_g_ret")

QR = 144; OA = 160; MU = 184; MD = 188; VZ = 192; ONES = 196; VMA = 200; VMB = 201; VTM = 202; VKR = 204; VH32 = 205
KST = 160

def epilogue1(a, name):
    T = VT
    a(f"""
    s_lshl_b32 s40, s20, 12
    s_add_u32 s41, s63, s40
    s_add_u32 s42, s40, {KB + 16384}
    v_add_u32 v{T}, s42, v{VL16}
    """)
    for m in range(4):
        k0 = acc1(0, m); k1 = acc1(1, m)
        a(f"""
        v_cvt_pk_bf16_f32 v{k0}, v{k0}, v{k0+1}
        v_cvt_pk_bf16_f32 v{k0+1}, v{k0+2}, v{k0+3}
        v_cvt_pk_bf16_f32 v{k0+2}, v{k1}, v{k1+1}
        v_cvt_pk_bf16_f32 v{k0+3}, v{k1+2}, v{k1+3}
        buffer_store_dwordx4 {vr(k0,4)}, v{VL16}, s[12:15], s41 offen offset:{1024*m} sc1
        ds_write_b128 v{T}, {vr(k0,4)} offset:{1024*m}
        """)
    a("s_add_u32 s41, s41, 16384")
    for p in range(2):
        for dt in range(2):
            r = acc1(2 + dt, 2 * p)
            a(f"""
            v_cvt_pk_bf16_f32 v{r}, v{r}, v{r+1}
            v_cvt_pk_bf16_f32 v{r+1}, v{r+2}, v{r+3}
            v_cvt_pk_bf16_f32 v{r+2}, v{r+4}, v{r+5}
            v_cvt_pk_bf16_f32 v{r+3}, v{r+6}, v{r+7}
            buffer_store_dwordx4 {vr(r,4)}, v{VL16}, s[12:15], s41 offen offset:{1024*(2*p+dt)} sc1
            ds_write_b128 v{T}, {vr(r,4)} offset:{32768 + 1024*(2*p+dt)}
            """)
    a("s_waitcnt vmcnt(8)")
    for m in range(4):
        a(f"""
        v_sub_f32 v{VOG+m}, 1.0, v{VG+m}
        v_cvt_pk_bf16_f32 v{VOG+m}, v{VOG+m}, v{VOG+m}
        v_lshlrev_b32 v{VOG+m}, 16, v{VOG+m}
        """)
    a(f"""
    v_lshrrev_b32 v{T+1}, 5, v{VL}
    v_mul_u32_u24 v{T+1}, {MT_STRIDE}, v{T+1}
    v_and_b32 v{T+2}, 31, v{VL}
    v_lshl_add_u32 v{T+18}, v{T+2}, 4, v{T+1}
    s_lshl_b32 s44, s28, 4
    s_lshl_b32 s45, s20, 2
    s_add_u32 s44, s44, s45
    s_mul_i32 s44, s44, {MT_STRIDE}
    s_mul_i32 s45, s29, 7
    """)
    VH = T + 18
    for t in range(7):
        a(f"""
        s_add_u32 s46, s45, {t}           ; T
        s_mul_i32 s48, s46, 1171
        s_lshr_b32 s48, s48, 16           ; T/56
        s_lshl_b32 s48, s48, 4
        s_add_u32 s46, s46, s48           ; T + 16*(T/56)
        s_lshl_b32 s46, s46, 9
        s_add_u32 s46, s46, s44
        s_add_u32 s48, s46, {2*MT_STRIDE}
        """)
        for p in range(2):
            r = acc1(6 + t, 2 * p)
            for h in range(2):
                for q in range(4):
                    a(f"v_mul_f32 v{r+4*h+q}, v{r+4*h+q}, v{VOG+2*p+h}")
            for q in range(4):
                a(f"v_cvt_pk_bf16_f32 v{r+q}, v{r+2*q}, v{r+2*q+1}")
            for q in range(4):
                a(f"v_pk_max_i16 v{r+q}, v{r+q}, 0")
            a(f"v_permlane32_swap_b32 v{r}, v{r+2}")
            a(f"v_permlane32_swap_b32 v{r+1}, v{r+3}")
            a(f"buffer_store_dwordx4 {vr(r,4)}, v{VH}, s[12:15], s{46+2*p} offen sc1")
    stamp(a, 7)
    a("s_waitcnt vmcnt(14) lgkmcnt(0)")
    a("s_barrier")
    a(f"""
    v_mov_b32 v{T}, 1
    v_mov_b32 v{T+1}, 0
    s_cmp_eq_u32 s20, 0
    s_cbranch_scc0 {name}_nokvf
    s_mov_b64 exec, 1
    buffer_store_dword v{T}, v{T+1}, s[12:15], s57 offen sc1
    s_mov_b64 exec, -1
    """)
    a.label(f"{name}_nokvf")
    srd(a, 16, 82, WS_USED)
    a(f"""
    s_sub_u32 s49, s57, {32*128}
    s_cmp_eq_u32 s28, 0
    s_cselect_b32 s18, 0, s18
    s_cselect_b32 s91, {hex(NEG)}, 0
    s_cbranch_scc1 {name}_spin_kv_ret
    buffer_load_dword v{VPOLL}, v{T+1}, s[12:15], s49 offen sc1
    """)
    attn_setup(a)
    a(f"""
    s_waitcnt vmcnt(0)
    v_cmp_ne_u32 vcc, 1, v{VPOLL}
    s_nop 4
    s_cbranch_vccnz {name}_spin_kv
    """)
    a.label(f"{name}_spin_kv_ret2")
    a(f"s_branch {name}_kvgo")
    a.label(f"{name}_spin_kv_ret")
    attn_setup(a)
    a.label(f"{name}_kvgo")
    stamp(a, 8)
    a(f"""
    s_lshl_b32 s40, s20, 12
    s_add_u32 m0, s40, {KB}
    s_add_u32 s41, s63, s40
    s_sub_u32 s41, s41, {32*32768}
    """)
    for p in range(4):
        a(f"buffer_load_dwordx4 v{VL16}, s[16:19], s41 offen offset:{1024*p} sc1 lds")
    a(f"s_add_u32 m0, s40, {VB}")
    a("s_add_u32 s41, s41, 16384")
    for p in range(4):
        a(f"buffer_load_dwordx4 v{VL16}, s[16:19], s41 offen offset:{1024*p} sc1 lds")
    a("s_waitcnt vmcnt(0)")
    a("s_barrier")
    a(f"""
    s_cmp_eq_u32 s20, 0
    s_cbranch_scc0 {name}_nohf
    s_mov_b64 exec, 1
    buffer_store_dword v{T}, v{T+1}, s[12:15], s58 offen sc1
    s_mov_b64 exec, -1
    """)
    a.label(f"{name}_nohf")
    stamp(a, 9)

def attn_setup(a):
    T = VT
    for m in range(4):
        q0 = acc1(4, m); q1 = acc1(5, m); d = QR + 4 * m
        a(f"""
        v_cvt_pk_bf16_f32 v{d}, v{q0}, v{q0+1}
        v_cvt_pk_bf16_f32 v{d+1}, v{q0+2}, v{q0+3}
        v_cvt_pk_bf16_f32 v{d+2}, v{q1}, v{q1+1}
        v_cvt_pk_bf16_f32 v{d+3}, v{q1+2}, v{q1+3}
        """)
    a(f"""
    v_and_b32 v{T+2}, 15, v{VL}
    v_lshrrev_b32 v{T+3}, 4, v{VL}
    v_lshlrev_b32 v{T+3}, 2, v{T+3}
    v_sub_u32 v{T+2}, v{T+2}, v{T+3}     ; q - 4g
    v_mov_b32 v{T+3}, {hex(NEG)}
    v_mov_b32 v{T+4}, s91
    """)
    for r in range(4):
        a(f"""
        v_cmp_gt_i32 vcc, {r}, v{T+2}
        v_cndmask_b32 v{MU+r}, v{T+3}, v{T+4}, vcc
        v_cndmask_b32 v{MD+r}, 0, v{T+3}, vcc
        v_mov_b32 v{ONES+r}, 0x3f803f80
        """)
    a(f"""
    s_lshl_b32 s40, s20, 12
    s_add_u32 s40, s40, {KB}
    v_add_u32 v{VKR}, s40, v{VL16}
    s_mov_b32 s90, {hex(f2u(CSC))}
    s_lshl_b32 s92, s20, 2
    s_sub_u32 s92, 16, s92
    s_cmp_eq_u32 s28, 0
    s_cselect_b32 s92, s92, 99
    """)

def attn_unit(a, name, u, ool, mid=None):
    QA = vr(QR + 8 * u, 4); QB = vr(QR + 8 * u + 4, 4)
    SA = lambda k: 8 * k
    SB = lambda k: 8 * k + 4
    kreg = lambda k: KST + 4 * k
    rdk = lambda k: f"ds_read_b128 {ar(kreg(k),4)}, v{VKR} offset:{(2*u + k)*1024}"
    rdv = lambda k: f"ds_read_b128 {ar(kreg(k),4)}, v{VKR} offset:{32768 + (2*u + k)*1024}"
    for r in range(4): a(f"v_mov_b32 v{VZ+r}, s91")
    for k in range(6): a(rdk(k))
    pend = []
    first = {0: True, 1: True}
    def maxops(which, s):
        m = VMA + which
        if first[which]:
            first[which] = False
            return [f"v_max3_f32 v{m}, v{s}, v{s+1}, v{s+2}", f"v_max_f32 v{m}, v{m}, v{s+3}"]
        return [f"v_max3_f32 v{m}, v{m}, v{s}, v{s+1}", f"v_max3_f32 v{m}, v{m}, v{s+2}, v{s+3}"]
    lg = 6
    for k in range(18):
        if k + 6 < 18:
            a(rdk(k + 6)); lg += 1
        elif k >= 14:
            a(rdv(k - 14)); lg += 1
        lg -= 1
        a(f"s_waitcnt lgkmcnt({lg})")
        if 2 <= k <= 14 and k % 2 == 0:
            a(f"s_cmp_eq_u32 s92, {k}")
            a(f"s_cbranch_scc1 {name}_zf_{u}_{k}")
            a.label(f"{name}_zfr_{u}_{k}")
            ool.append((f"{name}_zf_{u}_{k}", f"{name}_zfr_{u}_{k}"))
        K = ar(kreg(k), 4)
        if k <= 16:
            C = vr(MU, 4) if k == 0 else (vr(MD, 4) if k == 16 else vr(VZ, 4))
            a(f"{MFMA} {vr(SA(k),4)}, {K}, {QA}, {C}")
            for x in pend[:2]: a(x)
            pend = pend[2:]
        if k >= 1:
            C = vr(MU, 4) if k == 1 else (vr(MD, 4) if k == 17 else ("0" if k == 16 else vr(VZ, 4)))
            a(f"{MFMA} {vr(SB(k),4)}, {K}, {QB}, {C}")
            for x in pend[:2]: a(x)
            pend = pend[2:]
        if k >= 2:
            kk = k - 2
            if kk <= 16: pend += maxops(0, SA(kk))
            if kk >= 1: pend += maxops(1, SB(kk))
    for kk in (16, 17):
        if kk <= 16: pend += maxops(0, SA(kk))
        pend += maxops(1, SB(kk))
    a(rdv(4)); a(rdv(5)); lg += 2
    for x in pend: a(x)
    a(f"""
    v_mov_b32 v{VTM}, v{VMA}
    v_mov_b32 v{VTM+1}, v{VMB}
    v_permlane32_swap_b32 v{VMA}, v{VTM}
    v_permlane32_swap_b32 v{VMB}, v{VTM+1}
    v_max_f32 v{VMA}, v{VMA}, v{VTM}
    v_max_f32 v{VMB}, v{VMB}, v{VTM+1}
    v_mov_b32 v{VTM}, v{VMA}
    v_mov_b32 v{VTM+1}, v{VMB}
    v_permlane16_swap_b32 v{VMA}, v{VTM}
    v_permlane16_swap_b32 v{VMB}, v{VTM+1}
    v_max_f32 v{VMA}, v{VMA}, v{VTM}
    v_max_f32 v{VMB}, v{VMB}, v{VTM+1}
    v_mul_f32 v{VMA}, s90, v{VMA}
    v_mul_f32 v{VMB}, s90, v{VMB}
    s_sub_u32 s92, s92, 2
    """)
    if mid: mid()
    def pvm(p):
        out = []
        PA = vr(16 * p, 4); PB = vr(16 * p + 4, 4)
        for (P, o) in ((PA, OA), (PB, OA + 12)):
            for dt in range(2):
                D = vr(o + 4 * dt, 4)
                out.append(f"{MFMA} {D}, {ar(kreg(2*p+dt),4)}, {P}, {'0' if p == 0 else D}")
            D = vr(o + 8, 4)
            out.append(f"{MFMA} {D}, {vr(ONES,4)}, {P}, {'0' if p == 0 else D}")
        return out
    vnext = 6
    for p in range(10):
        va = []
        if p < 9:
            b = 16 * p
            live = [r for r in range(16) if not (p == 0 and 4 <= r < 8) and not (p == 8 and 8 <= r < 12)]
            for r in live:
                m = VMA if (r & 4) == 0 else VMB
                va.append(f"v_fma_f32 v{b+r}, v{b+r}, s90, -v{m}")
            for r in live:
                va.append(f"v_exp_f32 v{b+r}, v{b+r}")
            for (d, s) in ((0, 0), (1, 2), (2, 8), (3, 10), (4, 4), (5, 6), (6, 12), (7, 14)):
                if s in live: va.append(f"v_cvt_pk_bf16_f32 v{b+d}, v{b+s}, v{b+s+1}")
                else: va.append(f"v_mov_b32 v{b+d}, 0")
        mm = []
        if p >= 1:
            lg -= 2
            a(f"s_waitcnt lgkmcnt({lg})")
            mm = pvm(p - 1)
        if vnext < 18:
            a(rdv(vnext)); a(rdv(vnext + 1)); vnext += 2; lg += 2
        n = len(va)
        step = max(1, n // 6) if mm else n
        i = 0
        for k, x in enumerate(va):
            if mm and k % step == 2 % step and i < len(mm):
                a(mm[i]); i += 1
            a(x)
        while i < len(mm):
            a(mm[i]); i += 1
    T = VT
    a(f"""
    v_rcp_f32 v{VTM}, v{OA+8}
    v_rcp_f32 v{VTM+1}, v{OA+20}
    v_mul_f32 v{VTM}, v{VTM}, v{VG+2*u}
    v_mul_f32 v{VTM+1}, v{VTM+1}, v{VG+2*u+1}
    """)
    for r in range(8):
        a(f"v_mul_f32 v{OA+r}, v{OA+r}, v{VTM}")
        a(f"v_mul_f32 v{OA+12+r}, v{OA+12+r}, v{VTM+1}")
    for dt in range(2):
        d = T + 4 + 4 * dt
        a(f"""
        v_cvt_pk_bf16_f32 v{d}, v{OA+4*dt}, v{OA+4*dt+1}
        v_cvt_pk_bf16_f32 v{d+1}, v{OA+4*dt+2}, v{OA+4*dt+3}
        v_cvt_pk_bf16_f32 v{d+2}, v{OA+12+4*dt}, v{OA+12+4*dt+1}
        v_cvt_pk_bf16_f32 v{d+3}, v{OA+12+4*dt+2}, v{OA+12+4*dt+3}
        v_permlane32_swap_b32 v{d}, v{d+2}
        v_permlane32_swap_b32 v{d+1}, v{d+3}
        buffer_store_dwordx4 {vr(d,4)}, v{T+18}, s[12:15], s56 offen offset:{512*dt} sc1
        """)
    a(f"s_add_u32 s56, s56, {2*MT_STRIDE}")

def attention(a, name, ool):
    a(f"""
    s_lshr_b32 s40, s29, 3
    s_mul_i32 s40, s40, 36
    s_and_b32 s41, s29, 7
    s_add_u32 s40, s40, s41
    s_add_u32 s40, s40, 28
    s_lshl_b32 s40, s40, 10
    s_add_u32 s56, s40, s44
    """)
    if O.stop != 'p1':
        p2_prefetch_w(a)
    attn_unit(a, name, 0, ool, mid=(lambda: p2_poll_h(a)) if O.stop != 'p1' else None)
    stamp(a, 10)
    if O.stop != 'p1':
        p2_prefetch_a(a, name)
    attn_unit(a, name, 1, ool)
    stamp(a, 11)

VA2 = 209; VW2 = 213; VR2 = 217
R2 = 6
AR2 = 0; WF2 = 96
def acc2(n, m): return (n * 4 + m) * 4

def p2_setup_fill():
    T = VT
    txt = f"""
    s_and_b32 s40, s2, 7
    s_lshr_b32 s41, s2, 3
    s_and_b32 s62, s40, 1            ; kh
    s_lshr_b32 s60, s40, 1
    s_lshl_b32 s60, s60, 2
    s_and_b32 s42, s41, 3
    s_add_u32 s60, s60, s42          ; mt
    s_lshr_b32 s61, s41, 2           ; nt
    s_and_b32 s88, s20, 1            ; wm
    s_lshr_b32 s89, s20, 1           ; wk
    s_lshl_b32 s42, s62, 1
    s_add_u32 s42, s42, s89          ; quarter
    s_lshl_b32 s84, s60, 3
    s_lshl_b32 s43, s88, 2
    s_add_u32 s84, s84, s43
    s_mul_i32 s84, s84, 144
    s_mul_i32 s43, s42, 36
    s_add_u32 s84, s84, s43
    s_lshl_b32 s84, s84, 10          ; A soffset
    s_mul_i32 s85, s42, {28*32*2048} ; W2 soffset
    s_mul_i32 s86, s42, {8*32*2048}
    s_mul_i32 s87, s89, {R2*8192}
    s_lshl_b32 s43, s88, 12
    s_add_u32 s94, s87, s43          ; M0 base
    v_mov_b32 v{VA2}, v{VL16}
    v_add_u32 v{VA2+1}, {MT_STRIDE}, v{VL16}
    v_add_u32 v{VA2+2}, {2*MT_STRIDE}, v{VL16}
    v_add_u32 v{VA2+3}, {3*MT_STRIDE}, v{VL16}
    v_lshrrev_b32 v{T}, 4, v{VL}
    v_and_b32 v{T+1}, 15, v{VL}
    v_lshlrev_b32 v{T+2}, 1, v{T}
    v_xor_b32 v{T+1}, v{T+1}, v{T+2}
    v_lshlrev_b32 v{T}, 11, v{T}
    v_lshl_add_u32 v{T}, v{T+1}, 4, v{T}
    s_lshl_b32 s43, s88, 15
    s_lshl_b32 s42, s61, 8
    s_add_u32 s43, s43, s42
    v_add_u32 v{VW2}, s43, v{T}
    v_xor_b32 v{T}, 128, v{VW2}
    v_add_u32 v{VW2+1}, {4*2048-1024}, v{T}
    v_add_u32 v{VW2+2}, {8*2048-2048}, v{VW2}
    v_add_u32 v{VW2+3}, {12*2048-3072}, v{T}
    v_bfe_u32 v{T}, v{VL}, 2, 2
    v_bfe_u32 v{T+1}, v{VL}, 4, 1
    v_lshl_add_u32 v{T}, v{T+1}, 2, v{T}     ; row&7
    v_mul_u32_u24 v{T}, 288, v{T}
    v_lshrrev_b32 v{T+1}, 5, v{VL}
    v_lshl_add_u32 v{T}, v{T+1}, 12, v{T}
    v_and_b32 v{T+1}, 3, v{VL}
    v_lshl_add_u32 v{T}, v{T+1}, 3, v{T}
    v_add_u32 v{VR2}, s87, v{T}
    """
    L = [l.strip() for l in txt.strip().split("\n")]
    for n in range(1, 8):
        L.append(f"v_xor_b32 v{VR2+n}, {32*n}, v{VR2}")
    L += [f"s_mov_b32 s8, s74", "s_and_b32 s9, s75, 0xffff", f"s_mov_b32 s10, {3584*2048}",
          "s_mov_b32 s4, s82", "s_and_b32 s5, s83, 0xffff", f"s_mov_b32 s6, {KV_OFF}", "s_and_b32 s69, s69, 0xffff"]
    return [(2 + i // 2, l) for i, l in enumerate(L)]

def w2_dma(slot):
    g = [[f"s_add_u32 m0, s94, {slot*8192}", f"buffer_load_dwordx4 v{VW2}, s[8:11], s85 offen lds"]]
    for p in range(1, 4):
        g.append([f"buffer_load_dwordx4 v{VW2+p}, s[8:11], s85 offen offset:{1024*p} lds"])
    g[-1].append(f"s_add_u32 s85, s85, {32*2048}")
    return g

def a2_ld(slot, m):
    return f"buffer_load_dwordx4 {ar(AR2+16*slot+4*m,4)}, v{VA2+m}, s[4:7], s84 offen sc1"

def p2_prefetch_w(a):
    for s in range(R2):
        for g in w2_dma(s):
            for x in g: a(x)

def p2_poll_h(a):
    T = VT
    a(f"""
    v_and_b32 v{T+19}, 15, v{VL}
    v_lshlrev_b32 v{T+19}, 2, v{T+19}
    s_lshr_b32 s95, s60, 1
    s_lshl_b32 s95, s95, 7
    s_lshl_b32 s40, s62, 6
    s_add_u32 s95, s95, s40
    s_add_u32 s95, s95, {HF_OFF}
    buffer_load_dword v{VPOLL}, v{T+19}, s[12:15], s95 offen sc1
    """)

def p2_prefetch_a(a, name):
    a(f"""
    s_waitcnt vmcnt(2)
    v_cmp_ne_u32 vcc, 1, v{VPOLL}
    s_nop 4
    s_cbranch_vccnz {name}_spin_h
    """)
    a.label(f"{name}_spin_h_ret")
    for s in range(R2):
        for m in range(4): a(a2_ld(s, m))
        a("s_add_u32 s84, s84, 1024")

def reads2(st, slot):
    return [f"ds_read_b64_tr_b16 {ar(WF2+32*st+4*n+2*t,2)}, v{VR2+n} offset:{slot*8192 + t*2048}" for n in range(8) for t in range(2)]

def phase2(a, name):
    T = VT
    a("s_waitcnt vmcnt(26)")
    a("s_barrier")
    for r in reads2(0, 0): a(r)
    for r in range(128): a(f"v_mov_b32 v{r}, 0")
    a(f"s_mov_b32 s30, 0")
    a(f"s_add_u32 s95, s95, {OF_OFF - HF_OFF}")
    a("s_waitcnt vmcnt(2) lgkmcnt(0)")
    a("s_barrier")
    stamp(a, 12)
    a.raw(".p2align 6")
    a.label(f"{name}_loop2")
    for pos in range(R2):
        st = pos & 1
        if pos in (4, 5):
            a(f"s_cmp_lt_u32 s30, 4")
            a(f"s_cbranch_scc1 {name}_ev2_{pos}")
            a.label(f"{name}_ev2r_{pos}")
        mf = []
        for m in range(4):
            for n in range(8):
                D = vr(acc2(n, m), 4)
                mf.append(f"{MFMA} {D}, {ar(WF2+32*st+4*n,4)}, {ar(AR2+16*pos+4*m,4)}, {D}")
        fill = [[] for _ in mf]
        for i, r in enumerate(reads2(st ^ 1, (pos + 1) % R2)): fill[i].append(r)
        g = w2_dma(pos)
        fill[1].append(g[0][0]); fill[2].append(g[0][1])
        fill[10] += g[1]; fill[18] += g[2]; fill[25] += g[3]
        for m in range(3): fill[8 * m + 7 + (0 if m else 0)].append(a2_ld(pos, m))
        fill[31].append(a2_ld(pos, 3))
        fill[28].append("s_waitcnt vmcnt(32) lgkmcnt(0)")
        fill[28].append("s_barrier")
        if pos == R2 - 1:
            fill[29] += ["s_add_u32 s30, s30, 1", "s_cmp_lt_u32 s30, 5"]
            fill[30] += ["s_cselect_b32 s10, s10, 0"]
            fill[31] += ["s_cselect_b32 s6, s6, 0", "s_add_u32 s84, s84, 1024", "s_cmp_lt_u32 s30, 6"]
        else:
            fill[31].append("s_add_u32 s84, s84, 1024")
        emit_gaps(a, mf, fill)
    a(f"s_cbranch_scc1 {name}_loop2")
    stamp(a, 13)
    final2(a, name)

def events2(a, name):
    T = VT
    a.label(f"{name}_ev2_4")
    a(f"""
    s_cmp_eq_u32 s30, 3
    s_cbranch_scc0 {name}_ev2r_4
    v_cmp_ne_u32 vcc, 1, v{VPOLL}
    s_mov_b32 s8, s68
    s_mov_b32 s9, s69
    s_mov_b32 s10, {1024*2048}
    s_mov_b32 s85, s86
    s_nop 1
    s_cbranch_vccnz {name}_spin_o
    s_branch {name}_ev2r_4
    """)
    a.label(f"{name}_ev2_5")
    a(f"""
    s_cmp_eq_u32 s30, 2
    s_cbranch_scc1 {name}_ev2_5b
    s_add_u32 s40, s30, s20
    s_cmp_eq_u32 s40, 0
    s_cbranch_scc0 {name}_ev2r_5
    v_mov_b32 v{T}, 1
    v_mov_b32 v{T+1}, 0
    s_mov_b64 exec, 1
    buffer_store_dword v{T}, v{T+1}, s[12:15], s59 offen sc1
    s_mov_b64 exec, -1
    s_branch {name}_ev2r_5
    """)
    a.label(f"{name}_ev2_5b")
    a(f"""
    buffer_load_dword v{VPOLL}, v{T+19}, s[12:15], s95 offen sc1
    s_branch {name}_ev2r_5
    """)
    spin(a, name, "h", 12, "s95", T + 19, 1, f"{name}_spin_h_ret")
    spin(a, name, "o", 12, "s95", T + 19, 1, f"{name}_ev2r_4")
    spin(a, name, "p", 12, "s46", T + 1, 1, f"{name}_spin_p_ret")

def final2(a, name):
    T = VT
    RED = KB
    a(f"""
    s_xor_b32 s40, s20, 2
    s_lshl_b32 s40, s40, 14
    s_add_u32 s40, s40, {RED}
    v_add_u32 v{T}, s40, v{VL16}
    s_lshl_b32 s40, s20, 14
    s_add_u32 s40, s40, {RED}
    v_add_u32 v{T+2}, s40, v{VL16}
    s_cmp_eq_u32 s89, 0
    s_cbranch_scc1 {name}_red0
    """)
    for q in range(16): a(f"ds_write_b128 v{T}, {vr(4*q,4)} offset:{1024*q}")
    a("s_nop 1")
    for r in range(64): a(f"v_mov_b32 v{r}, v{64+r}")
    a(f"s_branch {name}_red1")
    a.label(f"{name}_red0")
    for q in range(16): a(f"ds_write_b128 v{T}, {vr(64+4*q,4)} offset:{1024*q}")
    a.label(f"{name}_red1")
    a("s_waitcnt lgkmcnt(0)")
    a("s_barrier")
    for q in range(16): a(f"ds_read_b128 {vr(64+4*q,4)}, v{T+2} offset:{1024*q}")
    a(f"""
    s_lshl_b32 s40, s2, 2
    s_add_u32 s40, s40, s20
    s_lshl_b32 s41, s40, 13
    s_add_u32 s41, s41, {PX_OFF}
    s_xor_b32 s42, s40, 4
    s_lshl_b32 s43, s42, 13
    s_add_u32 s43, s43, {PX_OFF}
    s_lshl_b32 s45, s40, 7
    s_add_u32 s45, s45, {PF_OFF}
    s_lshl_b32 s46, s42, 7
    s_add_u32 s46, s46, {PF_OFF}
    s_add_u32 s47, s41, 4096
    s_add_u32 s48, s43, 4096
    """)
    for q in range(16):
        if q % 4 == 0: a(f"s_waitcnt lgkmcnt({12 - q})")
        for r in range(4): a(f"v_add_f32 v{4*q+r}, v{4*q+r}, v{64+4*q+r}")
    stamp(a, 14)
    a(f"s_cmp_eq_u32 s62, 0")
    a(f"s_cbranch_scc1 {name}_x0")
    for n in range(4):
        for h in range(2):
            i = 2 * n + h
            a(f"buffer_store_dwordx4 {vr(16*n+4*h,4)}, v{VL16}, s[12:15], s{41 if i < 4 else 47} offen offset:{1024*(i%4)} sc1")
    a("s_nop 1")
    for n in range(4):
        for r in range(8): a(f"v_mov_b32 v{16*n+r}, v{16*n+8+r}")
    a(f"s_branch {name}_x1")
    a.label(f"{name}_x0")
    for n in range(4):
        for h in range(2):
            i = 2 * n + h
            a(f"buffer_store_dwordx4 {vr(16*n+8+4*h,4)}, v{VL16}, s[12:15], s{41 if i < 4 else 47} offen offset:{1024*(i%4)} sc1")
    a.label(f"{name}_x1")
    a(f"""
    v_mov_b32 v{T}, 1
    v_mov_b32 v{T+1}, 0
    s_waitcnt vmcnt(0)
    s_mov_b64 exec, 1
    buffer_store_dword v{T}, v{T+1}, s[12:15], s45 offen sc1
    s_mov_b64 exec, -1
    """)
    stamp(a, 15)
    srd(a, 16, 78, 2048*1024*2)
    a(f"""
    v_and_b32 v{T+2}, 15, v{VL}
    v_lshlrev_b32 v{T+2}, 11, v{T+2}
    v_bfe_u32 v{T+3}, v{VL}, 4, 1
    v_lshl_add_u32 v{T+2}, v{T+3}, 5, v{T+2}
    v_lshrrev_b32 v{T+3}, 5, v{VL}
    v_lshl_add_u32 v{T+2}, v{T+3}, 4, v{T+2}
    s_lshl_b32 s40, s60, 2
    s_lshl_b32 s41, s88, 1
    s_add_u32 s40, s40, s41
    s_add_u32 s40, s40, s62
    s_lshl_b32 s40, s40, 16
    s_lshl_b32 s41, s61, 8
    s_add_u32 s40, s40, s41
    s_lshl_b32 s41, s89, 7
    s_add_u32 s40, s40, s41
    s_add_u32 s41, s40, {16*2048}
    s_branch {name}_spin_p
    """)
    a.label(f"{name}_spin_p_ret")
    stamp(a, 16)
    for n in range(4):
        for h in range(2):
            i = 2 * n + h
            a(f"buffer_load_dwordx4 {vr(64+4*i,4)}, v{VL16}, s[12:15], s{43 if i < 4 else 48} offen offset:{1024*(i%4)} sc1")
    for np_ in range(2):
        a(f"s_waitcnt vmcnt({4 if np_ == 0 else 2})")
        for h in range(2):
            d = 96 + 8 * np_ + 4 * h
            for k in range(2):
                n = 2 * np_ + k
                r = 16 * n + 4 * h; s = 64 + 4 * (2 * n + h)
                for q in range(4): a(f"v_add_f32 v{r+q}, v{r+q}, v{s+q}")
                a(f"v_cvt_pk_bf16_f32 v{d+2*k}, v{r}, v{r+1}")
                a(f"v_cvt_pk_bf16_f32 v{d+2*k+1}, v{r+2}, v{r+3}")
            a(f"v_permlane16_swap_b32 v{d}, v{d+2}")
            a(f"v_permlane16_swap_b32 v{d+1}, v{d+3}")
            a(f"buffer_store_dwordx4 {vr(d,4)}, v{T+2}, s[16:19], s{40+h} offen offset:{64*np_}")
    if O.diag:
        a("s_waitcnt vmcnt(0)")
    stamp(a, 17)

def build():
    name = "fused_kernel"
    HDR = open("gated_mix__sliding_block__dense_activation_relu__prompt.s.ref").read().split("; Override launch")[0]
    a = Asm()
    kernel_begin(a, name)
    ool = []
    phase1(a, name)
    epilogue1(a, name)
    attention(a, name, ool)
    if O.stop != 'p1':
        phase2(a, name)
    dump(a)
    a.label(f"{name}_end")
    a("s_endpgm")
    events1(a, name)
    spin(a, name, "kv", 12, "s49", VT + 1, 1, f"{name}_spin_kv_ret2")
    if O.stop != 'p1':
        events2(a, name)
    for (l, r) in ool:
        a.label(l)
        a("s_nop 3")
        for q in range(4): a(f"v_mov_b32 v{VZ+q}, 0")
        a("s_nop 1")
        a(f"s_branch {r}")
    body = hazard.fix(a.lines, verbose=True)
    h = Asm()
    h.raw(HDR.rstrip("\n"))
    h.raw(f"; @launch kernel={name} grid=(256,1,1) block=(256,1,1) lds=163840")
    h.raw('.amdgcn_target "amdgcn-amd-amdhsa--gfx950"')
    h.lines += body
    kernel_desc(h, name, 512, 256)
    return h.text()

if __name__ == "__main__":
    for x in sys.argv[2:]:
        if x == "diag": O.diag = True
        if x == "p1": O.stop = 'p1'
        if x == "nopf": O.pf2 = False
    open(sys.argv[1], "w").write(build())
```

```python
import sys, struct
from asmlib import *
import hazard

A2_OFF = 0
KV_OFF = 0x1200000
PX_OFF = 0x1A00000
G_OFF  = 0x2200000
FL_OFF = 0x2204000
WS_USED = 0x2208000
DIAG_OFF = 0x2400000
MT_STRIDE = 144 * 1024

SLOT = 30720; NSLOT = 5
KB = 98304; VB = KB + 32768
NEG = 0xf149f2ca
CSC = 0.17677669529663687 * 1.4426950408889634
def f2u(x): return struct.unpack("<I", struct.pack("<f", x))[0]

class Opt:
    diag = False
    stop = None
    pf2 = True
    pf1 = True
O = Opt()

VL = 208; VD = 209; VXB = 219; VHB = 220; VQ0B = 221; VQ1B = 222
VXR = 223; VHR = 224; VQ0R = 225; VQ1R = 226
VG = 227; VOG = 231; VL16 = 235; VT = 236
VFL = 249; VONE = 250; VZERO = 251; VH = 252; VPA = 253; VPOLL = 254; VST = 255
QOFF = 16384; HOFF = 22528; GL = 153600
PFL = 12
PF0 = 3
MFMA = "v_mfma_f32_16x16x32_bf16"

nst = [0]
def stamp(a, n):
    if not O.diag: return
    a(f"""
    s_memtime s[96:97]
    s_memrealtime s[98:99]
    s_waitcnt lgkmcnt(0)
    v_writelane_b32 v{VST}, s96, {2*n}
    v_writelane_b32 v{VST}, s98, {2*n+1}
    """)

def dump(a):
    if not O.diag: return
    a(f"""
    s_mov_b32 s14, 0x4000000
    s_lshl_b32 s40, s2, 2
    s_add_u32 s40, s40, s20
    s_lshl_b32 s40, s40, 8
    s_add_u32 s40, s40, {DIAG_OFF}
    v_lshlrev_b32 v{VT}, 2, v{VL}
    buffer_store_dword v{VST}, v{VT}, s[12:15], s40 offen
    """)

def srd(a, d, lo, nrec):
    a(f"""
    s_mov_b32 s{d}, s{lo}
    s_and_b32 s{d+1}, s{lo+1}, 0xffff
    s_mov_b32 s{d+2}, {nrec}
    s_mov_b32 s{d+3}, 0x20000
    """)

def emit_gaps(a, mf, fill):
    for m, ins in enumerate(mf):
        a(ins)
        for f in fill[m]:
            a(f)

def spin(a, name, tag, srdn, soff, vaddr, want, ret, cmp="v_cmp_ne_u32"):
    a.label(f"{name}_spin_{tag}")
    a("s_mov_b32 s93, 0")
    a.label(f"{name}_spinl_{tag}")
    a(f"""
    buffer_load_dword v{VPOLL}, v{vaddr}, s[{srdn}:{srdn+3}], {soff} offen sc1
    s_add_u32 s93, s93, 1
    s_waitcnt vmcnt(0)
    {cmp} vcc, {want}, v{VPOLL}
    s_cmp_gt_u32 s93, 0x40000
    s_cbranch_scc1 {ret}
    s_nop 1
    s_cbranch_vccnz {name}_spinl_{tag}
    s_branch {ret}
    """)

def xf(st, i): return st * 68 + 4 * i
def wf(st, t): return st * 68 + 16 + 4 * t
def acc1(t, m): return (t * 4 + m) * 4
SEC = {0: 1, 1: 1, 2: 2, 3: 2, 4: 0, 5: 0}

def reads1(st):
    r = [f"ds_read_b128 {ar(xf(st,i),4)}, v{VXR} offset:{1024*i}" for i in range(4)]
    for t in range(13):
        for h in range(2):
            if t < 6:
                r.append(f"ds_read_b64_tr_b16 {ar(wf(st,t)+2*h,2)}, v{VQ0R + (t&1)} offset:{SEC[t]*1024 + h*512}")
            else:
                r.append(f"ds_read_b64_tr_b16 {ar(wf(st,t)+2*h,2)}, v{VHR} offset:{h*1792 + (t-6)*32}")
    return r

def mfmas1(st, czero=False):
    out = []
    for t in range(13):
        for m in range(4):
            D = vr(acc1(t, m), 4); W = ar(wf(st, t), 4); X = ar(xf(st, m), 4)
            C = "0" if czero else D
            if t in (2, 3): out.append(f"{MFMA} {D}, {X}, {W}, {C}")
            else: out.append(f"{MFMA} {D}, {W}, {X}, {C}")
    return out

def dma1(buf):
    g = [f"s_add_u32 m0, s31, {buf}"]
    for p in range(6):
        if p == 4: g.append("s_add_u32 m0, m0, 0x1000")
        g.append(f"buffer_load_dwordx4 v{VD+p}, s[4:7], s23 offen offset:{1024*(p&3)} lds")
    g.append("s_add_u32 s23, s23, s25")
    g.append(f"s_add_u32 m0, s32, {buf}")
    for p in range(4):
        g.append(f"buffer_load_dwordx4 v{VD+6+p}, s[8:11], s24 offen offset:{1024*p} lds")
    g.append("s_add_u32 s24, s24, s27")
    return g

VDUM = VD + 9
def pfW(): return [f"buffer_load_dword v{VDUM}, v{VD+1}, s[8:11], s24 offen", "s_add_u32 s24, s24, s27"]
def gate_loads():
    L = [f"buffer_load_dwordx4 {ar(GA,4)}, v{VD+2}, s[16:19], 0 offen", f"buffer_load_dwordx4 {ar(GA+4,4)}, v{VD+2}, s[16:19], 0 offen offset:16"]
    for r in range(8):
        for h in range(2):
            L.append(f"buffer_load_dwordx4 {ar(GA+8+8*r+4*h,4)}, v{VD+2}, s[4:7], s23 offen offset:{2048*(r&1)+16*h}")
        if r & 1: L.append("s_add_u32 s23, s23, 4096")
    return L

def cost(ins):
    if ins.endswith(":"): return 0
    if ins.startswith(("v_mfma", "v_exp", "v_rcp")): return 2
    return 1

def spread(fill, seq, lo, hi):
    n = sum(1 for x in seq if x.startswith("buffer_"))
    k = 0; last = lo - 1
    pre = []
    for x in seq:
        if x.startswith("buffer_"):
            pos = lo + (k * (hi - lo)) // n; k += 1
            for y in pre: fill[max(pos - 1, last)].append(y)
            pre = []
            fill[pos].append(x); last = pos
        elif "m0" in x.split(",")[0]:
            pre.append(x)
        else:
            last = last + 1
            fill[last].append(x)
    assert not pre

def stream(fill, q, lo=0, hi=None, cap=2):
    for gi in range(lo, hi if hi is not None else len(fill)):
        c = sum(cost(x) for x in fill[gi])
        while q:
            if q[0].startswith("@"):
                if gi < int(q[0][1:]): break
                q.pop(0); continue
            if c + cost(q[0]) > cap: break
            x = q.pop(0); c += cost(x); fill[gi].append(x)

def step1(a, st, rd=True, mem=(), czero=False, wait=None, nxt=None, post=(), extra=None, bar_at=45, q=None, memlo=1, qlo=0):
    mf = mfmas1(st, czero)
    fill = [[] for _ in mf]
    if rd:
        for n, r in enumerate(reads1(st ^ 1)):
            fill[n].append(r)
    if mem: spread(fill, list(mem), memlo, bar_at - 1)
    if extra:
        for pos, ins in extra: fill[pos].append(ins)
    if wait is not None:
        fill[bar_at].append(wait)
        fill[bar_at].append("s_barrier")
    if nxt is not None:
        for i, (cur, base) in enumerate(((VXR, VXB), (VHR, VHB), (VQ0R, VQ0B), (VQ1R, VQ1B))):
            fill[bar_at + 1 + i // 2].append(f"v_add_u32 v{cur}, {nxt}, v{base}")
    for i, p in enumerate(post):
        fill[51 if "branch" in p else min(51, bar_at + 3 + i // 2)].append(p)
    if q is not None: stream(fill, q, qlo, 51 if post else 52)
    emit_gaps(a, mf, fill)

def lds_bases(a):
    T = VT
    a(f"""
    v_and_b32 v{T}, 15, v{VL}
    v_lshlrev_b32 v{T+1}, 6, v{T}
    v_lshrrev_b32 v{T+2}, 4, v{VL}           ; G
    v_bfe_u32 v{T+3}, v{VL}, 3, 1
    v_lshlrev_b32 v{T+3}, 1, v{T+3}
    v_xor_b32 v{T+3}, v{T+3}, v{T+2}
    v_lshl_add_u32 v{T+1}, v{T+3}, 4, v{T+1}
    s_lshl_b32 s40, s20, 12
    v_add_u32 v{VXB}, s40, v{T+1}
    v_bfe_u32 v{T+3}, v{VL}, 2, 2            ; i>>2
    v_bfe_u32 v{T+4}, v{VL}, 4, 1            ; G&1
    v_lshl_add_u32 v{T+3}, v{T+4}, 2, v{T+3} ; (G&1)*4 + (i>>2)
    v_lshrrev_b32 v{T+5}, 5, v{VL}           ; G>>1
    v_and_b32 v{T+6}, 3, v{VL}
    v_lshlrev_b32 v{T+6}, 3, v{T+6}          ; (i&3)*8
    v_lshl_add_u32 v{T+7}, v{T+5}, 4, v{T+3}
    v_mul_u32_u24 v{T+7}, 224, v{T+7}
    v_add_u32 v{VHB}, v{T+7}, v{T+6}
    v_add_u32 v{VHB}, {HOFF}, v{VHB}
    v_mul_u32_u24 v{T+7}, 3072, v{T+5}
    v_lshl_add_u32 v{T+7}, v{T+3}, 6, v{T+7}
    v_lshl_add_u32 v{T+7}, v{T+4}, 5, v{T+7}
    v_add_u32 v{T+7}, v{T+7}, v{T+6}
    v_add_u32 v{VQ0B}, {QOFF}, v{T+7}
    v_xor_b32 v{VQ1B}, 32, v{VQ0B}
    v_mov_b32 v{VXR}, v{VXB}
    v_mov_b32 v{VHR}, v{VHB}
    v_mov_b32 v{VQ0R}, v{VQ0B}
    v_mov_b32 v{VQ1R}, v{VQ1B}
    s_lshl_b32 s42, s28, 5
    s_add_u32 s42, s42, s29          ; rb*32+j
    s_lshl_b32 s63, s42, 15
    s_add_u32 s63, s63, {KV_OFF}
    s_lshl_b32 s57, s28, 2
    s_add_u32 s57, s57, s20
    s_lshl_b32 s57, s57, 7
    s_add_u32 s57, s57, s29
    s_lshl_b32 s57, s57, 2
    s_add_u32 s57, s57, {FL_OFF}
    """)
    srd(a, 12, 82, WS_USED)

def first_reads(a):
    for r in reads1(0): a(r)
    for (cur, base) in ((VXR, VXB), (VHR, VHB), (VQ0R, VQ0B), (VQ1R, VQ1B)):
        a(f"v_add_u32 v{cur}, {SLOT}, v{base}")

def prologue(a, name):
    a(f"""
    s_cmp_ge_u32 s2, 256
    s_cbranch_scc1 {name}_end
    s_load_dwordx16 s[64:79], s[0:1], 0
    s_load_dwordx4 s[80:83], s[0:1], 64
    v_lshrrev_b32 v1, 6, v0
    v_and_b32 v{VL}, 63, v0
    s_and_b32 s40, s2, 7
    v_readfirstlane_b32 s20, v1
    s_lshr_b32 s41, s2, 3
    s_and_b32 s28, s40, 1
    s_lshl_b32 s28, s28, 2
    s_and_b32 s42, s41, 3
    s_add_u32 s28, s28, s42          ; rb
    s_lshr_b32 s29, s40, 1
    s_lshl_b32 s29, s29, 3
    s_lshr_b32 s42, s41, 2
    s_add_u32 s29, s29, s42          ; j
    """)
    if O.diag: a(f"v_mov_b32 v{VST}, 0")
    stamp(a, 0)
    T = VT
    a(f"""
    v_lshlrev_b32 v{VL16}, 4, v{VL}
    s_mov_b32 s23, 0
    s_mov_b32 s24, 0
    s_cmp_eq_u32 s20, 3
    s_cbranch_scc1 {name}_w3
    v_lshrrev_b32 v{T}, 2, v{VL}
    v_lshlrev_b32 v{T+8}, 11, v{T}
    v_and_b32 v{T+1}, 3, v{VL}
    v_bfe_u32 v{T+2}, v{VL}, 5, 1
    v_lshlrev_b32 v{T+2}, 1, v{T+2}
    v_xor_b32 v{T+2}, v{T+1}, v{T+2}
    v_lshl_add_u32 v{T+8}, v{T+2}, 4, v{T+8}
    s_lshl_b32 s40, s28, 19
    s_cmp_eq_u32 s20, 2
    s_cbranch_scc1 {name}_pq
    s_mul_i32 s41, s20, {10*32768}
    s_add_u32 s41, s41, s40
    v_add_u32 v{VD}, s41, v{T+8}
    """)
    for p in range(1, 6):
        a(f"v_add_u32 v{VD+p}, {p*32768 - 1024*(p&3)}, v{VD}")
    a(f"""
    s_mov_b32 s25, 64
    s_mul_i32 s31, s20, 10240
    s_waitcnt lgkmcnt(0)
    """)
    srd(a, 4, 64, 2048*1024*2)
    a(f"s_branch {name}_pdone")
    a.label(f"{name}_pq")
    a(f"""
    v_and_b32 v{T+3}, 3, v{T}
    v_bfe_u32 v{T+4}, v{T}, 2, 1
    v_lshl_add_u32 v{T+3}, v{T+4}, 3, v{T+3}
    v_bfe_u32 v{T+5}, v{T}, 3, 1
    v_lshl_add_u32 v{T+3}, v{T+5}, 2, v{T+3}   ; k low
    v_mul_u32_u24 v{T+3}, 6144, v{T+3}
    v_lshlrev_b32 v{T+4}, 1, v{T+4}
    v_xor_b32 v{T+2}, v{T+1}, v{T+4}
    v_lshl_add_u32 v{T+3}, v{T+2}, 4, v{T+3}
    s_lshl_b32 s42, s29, 6
    v_add_u32 v{VD}, s42, v{T+3}
    """)
    for p in range(1, 6):
        a(f"v_add_u32 v{VD+p}, {(p//3)*16*6144 + (p%3)*2048 - 1024*(p&3)}, v{VD}")
    a(f"""
    s_mov_b32 s25, {32*6144}
    s_mov_b32 s31, {QOFF}
    s_waitcnt lgkmcnt(0)
    """)
    srd(a, 4, 66, 1024*3072*2)
    a.label(f"{name}_pdone")
    stamp(a, 18)
    a(f"""
    s_cmp_eq_u32 s20, 0
    s_cbranch_scc1 {name}_qx
    s_lshl_b32 s41, s20, 8
    s_sub_u32 s41, s41, 256
    s_mul_i32 s42, s29, 224
    s_movk_i32 s43, 4682
    """)
    for p in range(4):
        a(f"""
        s_add_u32 s44, s41, {64*p}
        v_add_u32 v{T}, s44, v{VL}
        v_mul_u32_u24 v{T+1}, s43, v{T}
        v_lshrrev_b32 v{T+1}, 16, v{T+1}        ; rho
        v_mul_u32_u24 v{T+2}, 14, v{T+1}
        v_sub_u32 v{T+2}, v{T}, v{T+2}          ; chunk
        v_and_b32 v{T+3}, 0x13, v{T+1}
        v_bfe_u32 v{T+4}, v{T+1}, 2, 1
        v_lshl_add_u32 v{T+3}, v{T+4}, 3, v{T+3}
        v_bfe_u32 v{T+4}, v{T+1}, 3, 1
        v_lshl_add_u32 v{T+3}, v{T+4}, 2, v{T+3}   ; k
        v_mul_u32_u24 v{T+3}, 7168, v{T+3}
        v_lshl_add_u32 v{T+3}, v{T+2}, 4, v{T+3}
        s_sub_u32 s44, s42, {1024*p}
        """)
        if p == 3:
            a("""
            s_cmp_eq_u32 s20, 2
            s_cselect_b32 s44, 0x40000000, s44
            """)
        a(f"v_add_u32 v{VD+6+p}, s44, v{T+3}")
    a(f"""
    s_mov_b32 s27, {32*7168}
    s_lshl_b32 s32, s20, 12
    s_add_u32 s32, s32, {HOFF-4096}
    """)
    srd(a, 8, 72, 1024*3584*2)
    a(f"s_branch {name}_qdone")
    a.label(f"{name}_qx")
    for p in range(4):
        a(f"v_add_u32 v{VD+6+p}, {(6+p)*32768 - 1024*p}, v{VD}")
    a(f"""
    s_mov_b32 s27, 64
    s_mov_b32 s32, 6144
    """)
    srd(a, 8, 64, 2048*1024*2)
    a.label(f"{name}_qdone")
    lds_bases(a)
    stamp(a, 19)
    a("s_barrier")
    stamp(a, 20)
    for x in dma1(0): a(x)
    stamp(a, 21)
    for x in dma1(SLOT): a(x)
    stamp(a, 22)
    stamp(a, 1)
    a("s_waitcnt vmcnt(10)")
    stamp(a, 2)
    a("s_barrier")
    stamp(a, 23)
    first_reads(a)
    stamp(a, 24)
    for x in dma1(2 * SLOT): a(x)
    stamp(a, 3)
    a("s_waitcnt vmcnt(10) lgkmcnt(0)")
    a("s_barrier")
    stamp(a, 4)

GA = 136; GD = 208
def prologue3(a, name):
    T = VT
    a.label(f"{name}_w3")
    a(f"""
    s_lshl_b32 s40, s28, 8
    s_lshl_b32 s41, s29, 3
    s_add_u32 s48, s40, s41          ; row0
    s_lshl_b32 s23, s48, 11
    v_lshrrev_b32 v{T+1}, 3, v{VL}
    v_lshlrev_b32 v{T+1}, 11, v{T+1}
    v_and_b32 v{T+3}, 7, v{VL}
    v_lshl_add_u32 v{T+1}, v{T+3}, 7, v{T+1}
    v_mov_b32 v{T+2}, 0x40000000
    v_cmp_gt_u32 vcc, {XPF}, v{T+3}
    s_and_b32 s42, s2, 1
    s_cmp_eq_u32 s42, 0
    s_cselect_b32 s43, 56, 48
    v_cndmask_b32 v{VD}, v{T+2}, v{T+1}, vcc
    v_cmp_gt_u32 vcc, s43, v{VL}
    s_lshr_b32 s44, s2, 1
    s_mul_i32 s44, s44, s43
    v_add_lshl_u32 v{T+1}, s44, v{VL}, 7
    s_lshl_b32 s27, s43, 14
    s_lshl_b32 s10, s43, 17
    v_cndmask_b32 v{VD+1}, v{T+2}, v{T+1}, vcc
    s_mov_b32 s11, 0x20000
    s_cmp_eq_u32 s42, 0
    s_waitcnt lgkmcnt(0)
    s_cselect_b32 s8, s72, s66
    s_cselect_b32 s9, s73, s67
    s_and_b32 s9, s9, 0xffff
    """)
    if not O.pf1: a("s_mov_b32 s10, 0")
    srd(a, 4, 64, 2048*1024*2)
    stamp(a, 18)
    for x in pfW(): a(x)
    a(f"buffer_load_dword v{VDUM}, v{VD}, s[4:7], s23 offen")
    for _ in range(NW0 - 1):
        for x in pfW(): a(x)
    srd(a, 16, 76, 2048)
    a(f"""
    v_lshlrev_b32 v{VD+2}, 5, v{VL}
    v_lshlrev_b32 v{T+3}, 7, v{VL}
    s_lshl_b32 s44, s2, 13
    v_add_u32 v{VH}, s44, v{T+3}
    v_and_b32 v{VPA}, 7, v{VL}
    v_lshlrev_b32 v{VPA}, 5, v{VPA}
    """)
    lds_bases(a)
    srd(a, 36, 80, 256)
    stamp(a, 19)
    a(f"s_waitcnt vmcnt(0)")
    stamp(a, 20)
    a("s_barrier")
    stamp(a, 1)
    stamp(a, 2)
    a("s_barrier")
    first_reads(a)
    for x in W3PRO(): a(x)
    stamp(a, 3)
    a(f"s_waitcnt lgkmcnt(0)")
    a("s_barrier")
    stamp(a, 4)

def gate_stream():
    GW = VT; PK = 228; ON = VD + 3; t = [232, 233, 234, 227, VD + 7, VD + 8]
    ON = ON + (ON & 1)
    q = []
    for r in range(4): q.append(f"v_mov_b32 v{ON+r}, 0x3f803f80")
    for d in range(8):
        q += [f"v_accvgpr_read_b32 v{t[0]}, a{GA+d}", f"v_lshlrev_b32 v{GW+2*d}, 16, v{t[0]}", f"v_and_b32 v{GW+2*d+1}, 0xffff0000, v{t[0]}"]
    for r in range(8):
        for d in range(8):
            x, lo, hi = t[3*(d&1):3*(d&1)+3]
            q += [f"v_accvgpr_read_b32 v{x}, a{GA+8+8*r+d}", f"v_lshlrev_b32 v{lo}, 16, v{x}", f"v_and_b32 v{hi}, 0xffff0000, v{x}",
                  f"v_mul_f32 v{lo}, v{lo}, v{GW+2*d}", f"v_mul_f32 v{hi}, v{hi}, v{GW+2*d+1}",
                  f"v_cvt_pk_bf16_f32 v{PK+(d&3)}, v{lo}, v{hi}"]
            if d == 4 or (d == 0 and r > 0):
                rr = r if d == 4 else r - 1
                D = ar(GD + 4 * rr, 4)
                q.insert(len(q) - 4, f"{MFMA} {D}, {vr(ON,4)}, {vr(PK,4)}, {'0' if d == 4 else D}")
    D = ar(GD + 28, 4)
    q += ["s_lshl_b32 s48, s48, 2", f"s_add_u32 s48, s48, {G_OFF}", f"{MFMA} {D}, {vr(ON,4)}, {vr(PK,4)}, {D}"]
    E = GW
    q += [f"v_lshrrev_b32 v{E+8}, 4, v{VL}", f"v_bfe_u32 v{E+9}, v{VL}, 3, 1", f"v_lshl_add_u32 v{E+8}, v{E+9}, 2, v{E+8}",
          f"v_lshlrev_b32 v{E+8}, 2, v{E+8}", f"v_lshlrev_b32 v{E+9}, 7, v{VL}", f"v_mov_b32 v{E+10}, 0",
          "s_sub_u32 s49, s57, 1536",
          f"v_mov_b32 v{E+11}, 0x40000000", f"v_and_b32 v{E+12}, 7, v{VL}", f"v_cmp_eq_u32 vcc, 0, v{E+12}",
          f"v_cmp_gt_u32 s[40:41], 16, v{VL}", f"v_cndmask_b32 v{E+8}, v{E+11}, v{E+8}, vcc", f"v_cndmask_b32 v{E+9}, v{E+11}, v{E+9}, s[40:41]",
          f"v_cmp_eq_u32 vcc, 0, v{VL}", f"v_mov_b32 v{VONE}, 1", f"v_cndmask_b32 v{VFL}, v{E+11}, 0, vcc"]
    for r in range(8): q.append(f"v_accvgpr_read_b32 v{E+r}, a{GD+4*r}")
    for b in (0, 4):
        for g in range(1, 4):
            q.append(f"v_mov_b32_dpp v{E+b}, v{E+b+g} quad_perm:[0,1,2,3] row_mask:{1<<g} bank_mask:0xf")
    for sh in (8, 4, 2, 1):
        for b in (0, 4):
            q.append(f"v_add_f32_dpp v{E+b}, v{E+b}, v{E+b} row_ror:{sh} row_mask:0xf bank_mask:0xf")
    q.append(f"v_mov_b32_dpp v{E}, v{E+4} quad_perm:[0,1,2,3] row_mask:0xf bank_mask:0xc")
    q += [x.strip() for x in f"""
    v_cvt_pk_bf16_f32 v{E}, v{E}, v{E}
    v_lshlrev_b32 v{E}, 16, v{E}
    v_mul_f32 v{E}, 0xbfb8aa3b, v{E}
    v_exp_f32 v{E}, v{E}
    v_add_f32 v{E}, 1.0, v{E}
    v_rcp_f32 v{E}, v{E}
    v_cvt_pk_bf16_f32 v{E}, v{E}, v{E}
    v_lshlrev_b32 v{E}, 16, v{E}
    """.strip().split("\n")]
    tail = [f"buffer_store_dword v{E}, v{E+8}, s[12:15], s48 offen sc1",
            f"buffer_store_dword v{E+10}, v{E+9}, s[12:15], s49 offen sc1"]
    return q, tail

NPEEL3 = 12
XPF = 4
NW0 = 1
W3PRO = lambda: pfW()
W3MEM = {0: gate_loads, 2: pfW, 4: pfW, 7: pfW, 10: pfW}
GATE0 = 3
W3EV = [14, 16, 18, 20, 22, 24]

def phase1(a, name):
    prologue(a, name)
    h = lambda b: (dma1(b)[:9], dma1(b)[9:])
    B = lambda n: (n % NSLOT) * SLOT
    step1(a, 0, mem=dma1(B(3)) + h(B(4))[0], czero=True, wait="s_waitcnt vmcnt(16) lgkmcnt(0)", nxt=B(2))
    step1(a, 1, mem=h(B(4))[1] + dma1(B(5)), wait="s_waitcnt vmcnt(20) lgkmcnt(0)", nxt=B(3))
    step1(a, 0, mem=dma1(B(6)) + h(B(7))[0], wait="s_waitcnt vmcnt(26) lgkmcnt(0)", nxt=B(4))
    step1(a, 1, mem=h(B(7))[1] + dma1(B(8)), wait="s_waitcnt vmcnt(30) lgkmcnt(0)", nxt=B(5),
          post=[f"s_mov_b32 s21, {B(9)}", f"s_mov_b32 s22, {B(6)}", "s_mov_b32 s30, 4", f"s_mov_b32 s47, {B(5)}"])
    a.raw(".p2align 6")
    a.label(f"{name}_loop1")
    upd = ["s_mov_b32 s47, s22", f"s_add_u32 s22, s22, {SLOT}", f"s_cmp_eq_u32 s22, {NSLOT*SLOT}",
           "s_cselect_b32 s22, 0, s22"]
    step1(a, 0, mem=dma1("s21"), wait="s_waitcnt vmcnt(30) lgkmcnt(0)", nxt="s22",
          post=["s_cmp_lt_u32 s30, 26", "s_cselect_b32 s6, s6, 0", "s_cselect_b32 s10, s10, 0", f"s_cselect_b32 s21, s47, {2*SLOT}"] + upd)
    ex = []
    if O.diag:
        ex = [(44, "s_memtime s[96:97]"), (43, "s_lshr_b32 s98, s30, 1"), (43, "s_add_u32 m0, s98, 49"), (46, f"v_writelane_b32 v{VST}, s96, m0")]
    step1(a, 1, mem=dma1("s21"), wait="s_waitcnt vmcnt(30) lgkmcnt(0)", nxt="s22", extra=ex, bar_at=44,
          post=["s_cmp_lt_u32 s30, 26", f"s_cselect_b32 s21, s47, {2*SLOT}"] + upd + ["s_add_u32 s30, s30, 2", "s_cmp_lt_u32 s30, 30", f"s_cbranch_scc1 {name}_loop1"])
    a.label(f"{name}_s30")
    stamp(a, 5)
    T = VT
    ex = [(31, f"v_and_b32 v{T}, 15, v{VL}"), (31, f"v_lshlrev_b32 v{T}, 2, v{T}"),
          (32, "s_lshl_b32 s40, s20, 8"), (32, f"v_add_u32 v{T}, s40, v{T}"), (33, f"v_add_u32 v{T}, {GL}, v{T}")]
    for m in range(4):
        ex.append((34 + m, f"ds_read_b32 v{VG+m}, v{T} offset:{64*m}"))
    step1(a, 0, wait="s_waitcnt lgkmcnt(0)", extra=ex)
    q = kv_stream()
    step1(a, 1, rd=False, q=q, qlo=0)
    for x in q: a(x)
    stamp(a, 6)

def phase1_w3(a, name):
    prologue3(a, name)
    q, tail = gate_stream()
    W = "s_waitcnt lgkmcnt(0)"
    gs = [s for s in W3MEM if W3MEM[s] is gate_loads][0]
    young = sum(1 for s in W3MEM if gs < s < GATE0)
    q = [f"s_waitcnt vmcnt({young})"] + q
    for s in range(NPEEL3):
        post = []
        if s == NPEEL3 - 1:
            post = [f"s_mov_b32 s22, {((s+3) % NSLOT)*SLOT}", f"s_mov_b32 s30, {NPEEL3}", f"s_mov_b32 s33, {W3EV[0]}"]
        mem = W3MEM[s]() if s in W3MEM else ()
        step1(a, s & 1, mem=mem, memlo=1 if len(mem) > 4 else 31, czero=(s == 0), wait=W, nxt=((s + 2) % NSLOT) * SLOT,
              q=q if s >= GATE0 else None, post=post)
    print("gate leftover", len(q))
    for x in q + tail: a(x)
    a.raw(".p2align 6")
    a.label(f"{name}_loop3")
    upd = [f"s_add_u32 s22, s22, {SLOT}", f"s_cmp_eq_u32 s22, {NSLOT*SLOT}", "s_cselect_b32 s22, 0, s22"]
    step1(a, 0, wait=W, nxt="s22", post=upd + ["s_cmp_eq_u32 s30, 26", f"s_cbranch_scc1 {name}_evw2"])
    a.label(f"{name}_evw2ret")
    step1(a, 1, wait=W, nxt="s22",
          post=upd + ["s_add_u32 s30, s30, 2", "s_cmp_eq_u32 s30, s33", f"s_cbranch_scc1 {name}_ev1"])
    a.label(f"{name}_ev1ret")
    a("s_cmp_lt_u32 s30, 30")
    a(f"s_cbranch_scc1 {name}_loop3")
    a(f"s_branch {name}_s30")

def events1(a, name):
    T = VT
    a.label(f"{name}_evw2")
    srd(a, 4, 74, 3584*2048 if O.pf2 else 0)
    srd(a, 8, 68, 1024*2048 if O.pf2 else 0)
    for n in range(4):
        a(f"s_mov_b32 s23, {n * 0x200000}")
        a(f"buffer_load_dword v{VDUM}, v{VH}, s[4:7], s23 offen")
    a(f"buffer_load_dword v{VDUM}, v{VH}, s[8:11], 0 offen")
    a(f"s_branch {name}_evw2ret")
    E = W3EV
    body = [pfW(),
            ["s_lshl_b32 s40, s28, 5", "s_waitcnt vmcnt(1)", f"buffer_atomic_add v{VONE}, v{VFL}, s[36:39], s40 offen sc1"],
            pfW(),
            [f"buffer_load_dword v{VPOLL}, v{VPA}, s[36:39], 0 offen sc1"],
            lines(f"""
            s_waitcnt vmcnt(0)
            v_cmp_ne_u32 vcc, 32, v{VPOLL}
            s_lshl_b32 s40, s28, 10
            s_add_u32 s40, s40, {G_OFF}
            s_mov_b32 m0, {GL}
            s_nop 1
            s_cbranch_vccnz {name}_spin_g
            {name}_spin_g_ret:
            buffer_load_dwordx4 v{VL16}, s[12:15], s40 offen sc1 lds
            """),
            ["s_waitcnt vmcnt(0)"]]
    a.label(f"{name}_ev1")
    for i, b in enumerate(body):
        if i + 1 < len(body):
            a(f"s_cmp_eq_u32 s33, {E[i]}")
            a(f"s_cbranch_scc0 {name}_ev1_{i+1}")
        a(f"s_mov_b32 s33, {E[i+1] if i + 1 < len(body) else 999}")
        for x in b: a(x)
        a(f"s_branch {name}_ev1ret")
        if i + 1 < len(body): a.label(f"{name}_ev1_{i+1}")
    spin(a, name, "g", 36, "0", VPA, 32, f"{name}_spin_g_ret")

QR = 144; OA = 160; MU = 184; MD = 188; VZ = 192; ONES = 196; VMA = 200; VMB = 201; VTM = 202; VKR = 204; VH32 = 205
KST = 160

def lines(txt): return [l.strip() for l in txt.strip().split("\n") if l.strip()]

def kv_stream():
    T = VT
    q = lines(f"""
    s_lshl_b32 s40, s20, 12
    s_add_u32 s41, s63, s40
    s_add_u32 s42, s40, {KB + 16384}
    v_add_u32 v{T}, s42, v{VL16}
    s_add_u32 s43, s41, 16384
    """)
    for m in range(4):
        q += lines(f"""
        v_sub_f32 v{VOG+m}, 1.0, v{VG+m}
        v_cvt_pk_bf16_f32 v{VOG+m}, v{VOG+m}, v{VOG+m}
        v_lshlrev_b32 v{VOG+m}, 16, v{VOG+m}
        """)
    q.append("@9")
    for m in range(4):
        k0 = acc1(0, m); k1 = acc1(1, m)
        q += lines(f"""
        v_cvt_pk_bf16_f32 v{k0}, v{k0}, v{k0+1}
        v_cvt_pk_bf16_f32 v{k0+1}, v{k0+2}, v{k0+3}
        v_cvt_pk_bf16_f32 v{k0+2}, v{k1}, v{k1+1}
        v_cvt_pk_bf16_f32 v{k0+3}, v{k1+2}, v{k1+3}
        buffer_store_dwordx4 {vr(k0,4)}, v{VL16}, s[12:15], s41 offen offset:{1024*m} sc1
        ds_write_b128 v{T}, {vr(k0,4)} offset:{1024*m}
        """)
    for p in range(2):
        for dt in range(2):
            r = acc1(2 + dt, 2 * p)
            q += lines(f"""
            v_cvt_pk_bf16_f32 v{r}, v{r}, v{r+1}
            v_cvt_pk_bf16_f32 v{r+1}, v{r+2}, v{r+3}
            v_cvt_pk_bf16_f32 v{r+2}, v{r+4}, v{r+5}
            v_cvt_pk_bf16_f32 v{r+3}, v{r+6}, v{r+7}
            buffer_store_dwordx4 {vr(r,4)}, v{VL16}, s[12:15], s43 offen offset:{1024*(2*p+dt)} sc1
            ds_write_b128 v{T}, {vr(r,4)} offset:{32768 + 1024*(2*p+dt)}
            """)
    q += lines(f"""
    v_lshrrev_b32 v{T+1}, 5, v{VL}
    v_mul_u32_u24 v{T+1}, {MT_STRIDE}, v{T+1}
    v_and_b32 v{T+2}, 31, v{VL}
    v_lshl_add_u32 v{VH}, v{T+2}, 4, v{T+1}
    s_lshl_b32 s44, s28, 4
    s_lshl_b32 s45, s20, 2
    s_add_u32 s44, s44, s45
    s_mul_i32 s44, s44, {MT_STRIDE}
    s_mul_i32 s45, s29, 7
    v_cmp_eq_u32 vcc, 0, v{VL}
    v_mov_b32 v{VONE}, 1
    v_mov_b32 v{VZERO}, 0
    v_mov_b32 v{VFL}, 0x40000000
    v_cndmask_b32 v{VFL}, v{VFL}, 0, vcc
    """)
    q += h_valu(0)
    return q

def h_valu(t):
    q = []
    for p in range(2):
        r = acc1(6 + t, 2 * p)
        for h in range(2):
            for k in range(4):
                q.append(f"v_mul_f32 v{r+4*h+k}, v{r+4*h+k}, v{VOG+2*p+h}")
        for k in range(4):
            q.append(f"v_cvt_pk_bf16_f32 v{r+k}, v{r+2*k}, v{r+2*k+1}")
        for k in range(4):
            q.append(f"v_pk_max_i16 v{r+k}, v{r+k}, 0")
    for p in range(2):
        r = acc1(6 + t, 2 * p)
        q.append(f"v_permlane32_swap_b32 v{r}, v{r+2}")
        q.append(f"v_permlane32_swap_b32 v{r+1}, v{r+3}")
    return q

def h_addr(t):
    return lines(f"""
        s_add_u32 s46, s45, {t}           ; T
        s_mul_i32 s48, s46, 1171
        s_lshr_b32 s48, s48, 16           ; T/56
        s_lshl_b32 s48, s48, 4
        s_add_u32 s46, s46, s48           ; T + 16*(T/56)
        s_lshl_b32 s46, s46, 9
        s_add_u32 s46, s46, s44
        s_add_u32 s48, s46, {2*MT_STRIDE}
        """)
def h_store(t, p, agpr=None):
    r = acc1(6 + t, 2 * p)
    src = vr(r, 4) if agpr is None else ar(agpr, 4)
    return f"buffer_store_dwordx4 {src}, v{VH}, s[12:15], s{46+2*p} offen sc1"
HA = 2; HB = 4
def h_late():
    q = []
    for t in range(HB, 7):
        q += h_addr(t) + [h_store(t, p, 8 * t + 4 * p) for p in range(2)]
    return q

def epilogue1(a, name):
    T = VT
    for t in (1, 2):
        for x in h_valu(t): a(x)
    srd(a, 16, 82, WS_USED)
    a(f"""
    s_sub_u32 s49, s57, {2048 - 256}
    s_cmp_eq_u32 s28, 0
    s_cselect_b32 s18, 0, s18
    s_cselect_b32 s91, {hex(NEG)}, 0
    s_cselect_b32 s49, s57, s49
    s_cselect_b32 s50, 0, 1
    s_waitcnt vmcnt(0)
    buffer_store_dword v{VONE}, v{VFL}, s[12:15], s57 offen offset:256 sc1
    """)
    stamp(a, 7)
    for t in range(HA):
        for x in h_addr(t) + [h_store(t, 0), h_store(t, 1)]: a(x)
        for x in h_valu(3 + t): a(x)
    for t in range(3 + HA, 5):
        for x in h_valu(t): a(x)
    a(f"buffer_load_dword v{VPOLL}, v{VZERO}, s[12:15], s49 offen sc1")
    for t in (5, 6):
        for x in h_valu(t): a(x)
    for t in range(HB, 7):
        for p in range(2):
            for k in range(4): a(f"v_accvgpr_write_b32 a{8*t+4*p+k}, v{acc1(6+t, 2*p)+k}")
    a(f"""
    s_lshl_b32 s40, s20, 12
    s_add_u32 m0, s40, {KB}
    s_add_u32 s41, s63, s40
    s_sub_u32 s41, s41, {32*32768}
    s_waitcnt vmcnt(0)
    v_cmp_ne_u32 vcc, s50, v{VPOLL}
    s_nop 4
    s_cbranch_vccnz {name}_spin_kv
    """)
    a.label(f"{name}_spin_kv_ret")
    stamp(a, 8)
    for p in range(4):
        a(f"buffer_load_dwordx4 v{VL16}, s[16:19], s41 offen offset:{1024*p} sc1 lds")
    a(f"s_add_u32 m0, s40, {VB}")
    a("s_add_u32 s41, s41, 16384")
    for p in range(4):
        a(f"buffer_load_dwordx4 v{VL16}, s[16:19], s41 offen offset:{1024*p} sc1 lds")
    for t in range(HA, HB):
        for x in h_addr(t) + [h_store(t, 0), h_store(t, 1)]: a(x)
    attn_setup(a)
    for (_, x) in p2_setup_fill(): a(x)
    a(f"s_waitcnt vmcnt({2*(HB-HA)}) lgkmcnt(0)")
    a("s_barrier")
    stamp(a, 9)

def attn_setup(a):
    T = VT
    for m in range(4):
        q0 = acc1(4, m); q1 = acc1(5, m); d = QR + 4 * m
        a(f"""
        v_cvt_pk_bf16_f32 v{d}, v{q0}, v{q0+1}
        v_cvt_pk_bf16_f32 v{d+1}, v{q0+2}, v{q0+3}
        v_cvt_pk_bf16_f32 v{d+2}, v{q1}, v{q1+1}
        v_cvt_pk_bf16_f32 v{d+3}, v{q1+2}, v{q1+3}
        """)
    a(f"""
    v_and_b32 v{T+2}, 15, v{VL}
    v_lshrrev_b32 v{T+3}, 4, v{VL}
    v_lshlrev_b32 v{T+3}, 2, v{T+3}
    v_sub_u32 v{T+2}, v{T+2}, v{T+3}     ; q - 4g
    v_mov_b32 v{T+3}, {hex(NEG)}
    v_mov_b32 v{T+4}, s91
    """)
    for r in range(4):
        a(f"""
        v_cmp_gt_i32 vcc, {r}, v{T+2}
        v_cndmask_b32 v{MU+r}, v{T+3}, v{T+4}, vcc
        v_cndmask_b32 v{MD+r}, 0, v{T+3}, vcc
        v_mov_b32 v{ONES+r}, 0x3f803f80
        """)
    a(f"""
    s_lshl_b32 s40, s20, 12
    s_add_u32 s40, s40, {KB}
    v_add_u32 v{VKR}, s40, v{VL16}
    s_mov_b32 s90, {hex(f2u(CSC))}
    s_lshl_b32 s92, s20, 2
    s_sub_u32 s92, 16, s92
    s_cmp_eq_u32 s28, 0
    s_cselect_b32 s92, s92, 99
    """)

def attn_unit(a, name, u, ool, mid=None, side=None, head=None, pre_store=()):
    QA = vr(QR + 8 * u, 4); QB = vr(QR + 8 * u + 4, 4)
    SA = lambda k: 8 * k
    SB = lambda k: 8 * k + 4
    kreg = lambda k: KST + 4 * k
    rdk = lambda k: f"ds_read_b128 {ar(kreg(k),4)}, v{VKR} offset:{(2*u + k)*1024}"
    rdv = lambda k: f"ds_read_b128 {ar(kreg(k),4)}, v{VKR} offset:{32768 + (2*u + k)*1024}"
    for r in range(4): a(f"v_mov_b32 v{VZ+r}, s91")
    for k in range(6): a(rdk(k))
    pend = []
    first = {0: True, 1: True}
    def maxops(which, s):
        m = VMA + which
        if first[which]:
            first[which] = False
            return [f"v_max3_f32 v{m}, v{s}, v{s+1}, v{s+2}", f"v_max_f32 v{m}, v{m}, v{s+3}"]
        return [f"v_max3_f32 v{m}, v{m}, v{s}, v{s+1}", f"v_max3_f32 v{m}, v{m}, v{s+2}, v{s+3}"]
    lg = 6
    for k in range(18):
        if k + 6 < 18:
            a(rdk(k + 6)); lg += 1
        elif k >= 14:
            a(rdv(k - 14)); lg += 1
        lg -= 1
        a(f"s_waitcnt lgkmcnt({lg})")
        if 2 <= k <= 14 and k % 2 == 0:
            a(f"s_cmp_eq_u32 s92, {k}")
            a(f"s_cbranch_scc1 {name}_zf_{u}_{k}")
            a.label(f"{name}_zfr_{u}_{k}")
            ool.append((f"{name}_zf_{u}_{k}", f"{name}_zfr_{u}_{k}"))
        K = ar(kreg(k), 4)
        if k <= 16:
            C = vr(MU, 4) if k == 0 else (vr(MD, 4) if k == 16 else vr(VZ, 4))
            a(f"{MFMA} {vr(SA(k),4)}, {K}, {QA}, {C}")
            for x in pend[:2]: a(x)
            pend = pend[2:]
        if k >= 1:
            C = vr(MU, 4) if k == 1 else (vr(MD, 4) if k == 17 else ("0" if k == 16 else vr(VZ, 4)))
            a(f"{MFMA} {vr(SB(k),4)}, {K}, {QB}, {C}")
            for x in pend[:2]: a(x)
            pend = pend[2:]
        if k >= 2:
            kk = k - 2
            if kk <= 16: pend += maxops(0, SA(kk))
            if kk >= 1: pend += maxops(1, SB(kk))
    for kk in (16, 17):
        if kk <= 16: pend += maxops(0, SA(kk))
        pend += maxops(1, SB(kk))
    a(rdv(4)); a(rdv(5)); lg += 2
    for x in pend: a(x)
    a(f"""
    v_mov_b32 v{VTM}, v{VMA}
    v_mov_b32 v{VTM+1}, v{VMB}
    v_permlane32_swap_b32 v{VMA}, v{VTM}
    v_permlane32_swap_b32 v{VMB}, v{VTM+1}
    v_max_f32 v{VMA}, v{VMA}, v{VTM}
    v_max_f32 v{VMB}, v{VMB}, v{VTM+1}
    v_mov_b32 v{VTM}, v{VMA}
    v_mov_b32 v{VTM+1}, v{VMB}
    v_permlane16_swap_b32 v{VMA}, v{VTM}
    v_permlane16_swap_b32 v{VMB}, v{VTM+1}
    v_max_f32 v{VMA}, v{VMA}, v{VTM}
    v_max_f32 v{VMB}, v{VMB}, v{VTM+1}
    v_mul_f32 v{VMA}, s90, v{VMA}
    v_mul_f32 v{VMB}, s90, v{VMB}
    s_sub_u32 s92, s92, 2
    """)
    if mid: mid()
    def pvm(p):
        out = []
        PA = vr(16 * p, 4); PB = vr(16 * p + 4, 4)
        for (P, o) in ((PA, OA), (PB, OA + 12)):
            for dt in range(2):
                D = vr(o + 4 * dt, 4)
                out.append(f"{MFMA} {D}, {ar(kreg(2*p+dt),4)}, {P}, {'0' if p == 0 else D}")
            D = vr(o + 8, 4)
            out.append(f"{MFMA} {D}, {vr(ONES,4)}, {P}, {'0' if p == 0 else D}")
        return out
    vnext = 6
    for p in range(10):
        va = []
        if p < 9:
            b = 16 * p
            live = [r for r in range(16) if not (p == 0 and 4 <= r < 8) and not (p == 8 and 8 <= r < 12)]
            for r in live:
                m = VMA if (r & 4) == 0 else VMB
                va.append(f"v_fma_f32 v{b+r}, v{b+r}, s90, -v{m}")
            for r in live:
                va.append(f"v_exp_f32 v{b+r}, v{b+r}")
            for (d, s) in ((0, 0), (1, 2), (2, 8), (3, 10), (4, 4), (5, 6), (6, 12), (7, 14)):
                if s in live: va.append(f"v_cvt_pk_bf16_f32 v{b+d}, v{b+s}, v{b+s+1}")
                else: va.append(f"v_mov_b32 v{b+d}, 0")
        if head and p in head: head[p]()
        if side and p in side:
            sd = side[p]; st_ = max(1, len(va) // (len(sd) + 1)); nv = []
            for k, x in enumerate(va):
                nv.append(x)
                if (k + 1) % st_ == 0 and sd: nv.append(sd.pop(0))
            va = nv + sd
        mm = []
        if p >= 1:
            lg -= 2
            a(f"s_waitcnt lgkmcnt({lg})")
            mm = pvm(p - 1)
        if vnext < 18:
            a(rdv(vnext)); a(rdv(vnext + 1)); vnext += 2; lg += 2
        n = len(va)
        step = max(1, n // 6) if mm else n
        i = 0
        for k, x in enumerate(va):
            if mm and k % step == 2 % step and i < len(mm):
                a(mm[i]); i += 1
            a(x)
        while i < len(mm):
            a(mm[i]); i += 1
    T = VT
    a(f"""
    v_rcp_f32 v{VTM}, v{OA+8}
    v_rcp_f32 v{VTM+1}, v{OA+20}
    v_mul_f32 v{VTM}, v{VTM}, v{VG+2*u}
    v_mul_f32 v{VTM+1}, v{VTM+1}, v{VG+2*u+1}
    """)
    for r in range(8):
        a(f"v_mul_f32 v{OA+r}, v{OA+r}, v{VTM}")
        a(f"v_mul_f32 v{OA+12+r}, v{OA+12+r}, v{VTM+1}")
    for x in pre_store: a(x)
    for dt in range(2):
        d = T + 4 + 4 * dt
        a(f"""
        v_cvt_pk_bf16_f32 v{d}, v{OA+4*dt}, v{OA+4*dt+1}
        v_cvt_pk_bf16_f32 v{d+1}, v{OA+4*dt+2}, v{OA+4*dt+3}
        v_cvt_pk_bf16_f32 v{d+2}, v{OA+12+4*dt}, v{OA+12+4*dt+1}
        v_cvt_pk_bf16_f32 v{d+3}, v{OA+12+4*dt+2}, v{OA+12+4*dt+3}
        v_permlane32_swap_b32 v{d}, v{d+2}
        v_permlane32_swap_b32 v{d+1}, v{d+3}
        buffer_store_dwordx4 {vr(d,4)}, v{VH}, s[12:15], s56 offen offset:{512*dt} sc1
        """)
    a(f"s_add_u32 s56, s56, {2*MT_STRIDE}")

def attention(a, name, ool):
    a(f"""
    s_lshr_b32 s40, s29, 3
    s_mul_i32 s40, s40, 36
    s_and_b32 s41, s29, 7
    s_add_u32 s40, s40, s41
    s_add_u32 s40, s40, 28
    s_lshl_b32 s40, s40, 10
    s_add_u32 s56, s40, s44
    """)
    def chunks(L, ps):
        n = len(ps); per = (len(L) + n - 1) // n
        return {p: L[i*per:(i+1)*per] for i, p in enumerate(ps)}
    wd = [x for s_ in range(R2) for g in w2_dma(s_) for x in g]
    hf = lines(f"""
    s_waitcnt vmcnt(24)
    buffer_store_dword v{VONE}, v{VFL}, s[12:15], s57 offen sc1
    """)
    sd = chunks(h_late(), range(0, 3)); sd.update(chunks(wd, range(3, 9)))
    attn_unit(a, name, 0, ool, side=sd, pre_store=hf)
    stamp(a, 10)
    if O.stop != 'p1':
        al = []
        for s_ in range(R2):
            al += [a2_ld(s_, m) for m in range(4)] + ["s_add_u32 s84, s84, 1024"]
        attn_unit(a, name, 1, ool, mid=lambda: p2_poll_h(a), head={5: lambda: p2_check_h(a, name)}, side=chunks(al, range(5, 9)))
    else:
        attn_unit(a, name, 1, ool)
    stamp(a, 11)

VA2 = 209; VW2 = 213; VR2 = 217
R2 = 6
AR2 = 0; WF2 = 96
def acc2(n, m): return (n * 4 + m) * 4

def p2_setup_fill():
    T = VT
    txt = f"""
    s_and_b32 s40, s2, 7
    s_lshr_b32 s41, s2, 3
    s_and_b32 s62, s40, 1            ; kh
    s_lshr_b32 s60, s40, 1
    s_lshl_b32 s60, s60, 2
    s_and_b32 s42, s41, 3
    s_add_u32 s60, s60, s42          ; mt
    s_lshr_b32 s61, s41, 2           ; nt
    s_and_b32 s88, s20, 1            ; wm
    s_lshr_b32 s89, s20, 1           ; wk
    s_lshl_b32 s42, s62, 1
    s_add_u32 s42, s42, s89          ; quarter
    s_lshl_b32 s84, s60, 3
    s_lshl_b32 s43, s88, 2
    s_add_u32 s84, s84, s43
    s_mul_i32 s84, s84, 144
    s_mul_i32 s43, s42, 36
    s_add_u32 s84, s84, s43
    s_lshl_b32 s84, s84, 10          ; A soffset
    s_mul_i32 s85, s42, {28*32*2048} ; W2 soffset
    s_mul_i32 s86, s42, {8*32*2048}
    s_mul_i32 s87, s89, {R2*8192}
    s_lshl_b32 s43, s88, 12
    s_add_u32 s94, s87, s43          ; M0 base
    v_mov_b32 v{VA2}, v{VL16}
    v_add_u32 v{VA2+1}, {MT_STRIDE}, v{VL16}
    v_add_u32 v{VA2+2}, {2*MT_STRIDE}, v{VL16}
    v_add_u32 v{VA2+3}, {3*MT_STRIDE}, v{VL16}
    v_lshrrev_b32 v{T}, 4, v{VL}
    v_and_b32 v{T+1}, 15, v{VL}
    v_lshlrev_b32 v{T+2}, 1, v{T}
    v_xor_b32 v{T+1}, v{T+1}, v{T+2}
    v_lshlrev_b32 v{T}, 11, v{T}
    v_lshl_add_u32 v{T}, v{T+1}, 4, v{T}
    s_lshl_b32 s43, s88, 15
    s_lshl_b32 s42, s61, 8
    s_add_u32 s43, s43, s42
    v_add_u32 v{VW2}, s43, v{T}
    v_xor_b32 v{T}, 128, v{VW2}
    v_add_u32 v{VW2+1}, {4*2048-1024}, v{T}
    v_add_u32 v{VW2+2}, {8*2048-2048}, v{VW2}
    v_add_u32 v{VW2+3}, {12*2048-3072}, v{T}
    v_bfe_u32 v{T}, v{VL}, 2, 2
    v_bfe_u32 v{T+1}, v{VL}, 4, 1
    v_lshl_add_u32 v{T}, v{T+1}, 2, v{T}     ; row&7
    v_mul_u32_u24 v{T}, 288, v{T}
    v_lshrrev_b32 v{T+1}, 5, v{VL}
    v_lshl_add_u32 v{T}, v{T+1}, 12, v{T}
    v_and_b32 v{T+1}, 3, v{VL}
    v_lshl_add_u32 v{T}, v{T+1}, 3, v{T}
    v_add_u32 v{VR2}, s87, v{T}
    """
    L = [l.strip() for l in txt.strip().split("\n")]
    for n in range(1, 8):
        L.append(f"v_xor_b32 v{VR2+n}, {32*n}, v{VR2}")
    L += [f"s_mov_b32 s8, s74", "s_and_b32 s9, s75, 0xffff", f"s_mov_b32 s10, {3584*2048}",
          "s_mov_b32 s4, s82", "s_and_b32 s5, s83, 0xffff", f"s_mov_b32 s6, {KV_OFF}", "s_and_b32 s69, s69, 0xffff"]
    return [(2 + i // 2, l) for i, l in enumerate(L)]

def w2_dma(slot):
    g = [[f"s_add_u32 m0, s94, {slot*8192}", f"buffer_load_dwordx4 v{VW2}, s[8:11], s85 offen lds"]]
    for p in range(1, 4):
        g.append([f"buffer_load_dwordx4 v{VW2+p}, s[8:11], s85 offen offset:{1024*p} lds"])
    g[-1].append(f"s_add_u32 s85, s85, {32*2048}")
    return g

def a2_ld(slot, m):
    return f"buffer_load_dwordx4 {ar(AR2+16*slot+4*m,4)}, v{VA2+m}, s[4:7], s84 offen sc1"

def p2_poll_h(a):
    a(f"""
    v_and_b32 v{VPA}, 7, v{VL}
    v_lshlrev_b32 v{VPA}, 2, v{VPA}
    s_lshl_b32 s95, s60, 1
    s_add_u32 s95, s95, s88
    s_lshl_b32 s95, s95, 9
    s_lshl_b32 s40, s62, 1
    s_add_u32 s40, s40, s89
    s_lshl_b32 s40, s40, 5
    s_add_u32 s95, s95, s40
    s_add_u32 s95, s95, {FL_OFF}
    buffer_load_dword v{VPOLL}, v{VPA}, s[12:15], s95 offen sc1
    """)

def p2_check_h(a, name):
    a(f"""
    s_waitcnt vmcnt(0)
    v_cmp_ne_u32 vcc, 1, v{VPOLL}
    s_nop 4
    s_cbranch_vccnz {name}_spin_h
    """)
    a.label(f"{name}_spin_h_ret")

def reads2(st, slot):
    return [f"ds_read_b64_tr_b16 {ar(WF2+32*st+4*n+2*t,2)}, v{VR2+n} offset:{slot*8192 + t*2048}" for n in range(8) for t in range(2)]

def phase2(a, name):
    T = VT
    a("s_waitcnt vmcnt(26)")
    a("s_barrier")
    for r in reads2(0, 0): a(r)
    for r in range(128): a(f"v_mov_b32 v{r}, 0")
    a(f"s_mov_b32 s30, 0")
    a(f"s_add_u32 s95, s95, 128")
    a("s_waitcnt vmcnt(14) lgkmcnt(0)")
    a("s_barrier")
    stamp(a, 12)
    a.raw(".p2align 6")
    a.label(f"{name}_loop2")
    for pos in range(R2):
        st = pos & 1
        if pos in (4, 5):
            a(f"s_cmp_lt_u32 s30, 4")
            a(f"s_cbranch_scc1 {name}_ev2_{pos}")
            a.label(f"{name}_ev2r_{pos}")
        mf = []
        for m in range(4):
            for n in range(8):
                D = vr(acc2(n, m), 4)
                mf.append(f"{MFMA} {D}, {ar(WF2+32*st+4*n,4)}, {ar(AR2+16*pos+4*m,4)}, {D}")
        fill = [[] for _ in mf]
        for i, r in enumerate(reads2(st ^ 1, (pos + 1) % R2)): fill[i].append(r)
        g = w2_dma(pos)
        fill[1].append(g[0][0]); fill[2].append(g[0][1])
        fill[10] += g[1]; fill[18] += g[2]; fill[25] += g[3]
        for m in range(3): fill[8 * m + 7 + (0 if m else 0)].append(a2_ld(pos, m))
        fill[31].append(a2_ld(pos, 3))
        fill[28].append("s_waitcnt vmcnt(32) lgkmcnt(0)")
        fill[28].append("s_barrier")
        if pos == R2 - 1:
            fill[29] += ["s_add_u32 s30, s30, 1", "s_cmp_lt_u32 s30, 5"]
            fill[30] += ["s_cselect_b32 s10, s10, 0"]
            fill[31] += ["s_cselect_b32 s6, s6, 0", "s_add_u32 s84, s84, 1024", "s_cmp_lt_u32 s30, 6"]
        else:
            fill[31].append("s_add_u32 s84, s84, 1024")
        emit_gaps(a, mf, fill)
    a(f"s_cbranch_scc1 {name}_loop2")
    stamp(a, 13)
    final2(a, name)

def events2(a, name):
    T = VT
    a.label(f"{name}_ev2_4")
    a(f"""
    s_cmp_eq_u32 s30, 3
    s_cbranch_scc0 {name}_ev2r_4
    v_cmp_ne_u32 vcc, 1, v{VPOLL}
    s_mov_b32 s8, s68
    s_mov_b32 s9, s69
    s_mov_b32 s10, {1024*2048}
    s_mov_b32 s85, s86
    s_nop 1
    s_cbranch_vccnz {name}_spin_o
    s_branch {name}_ev2r_4
    """)
    a.label(f"{name}_ev2_5")
    a(f"""
    s_cmp_eq_u32 s30, 2
    s_cbranch_scc1 {name}_ev2_5b
    s_cmp_eq_u32 s30, 0
    s_cbranch_scc0 {name}_ev2r_5
    buffer_store_dword v{VONE}, v{VFL}, s[12:15], s57 offen offset:128 sc1
    s_branch {name}_ev2r_5
    """)
    a.label(f"{name}_ev2_5b")
    a(f"""
    buffer_load_dword v{VPOLL}, v{VPA}, s[12:15], s95 offen sc1
    s_branch {name}_ev2r_5
    """)
    spin(a, name, "h", 12, "s95", VPA, 1, f"{name}_spin_h_ret")
    spin(a, name, "o", 12, "s95", VPA, 1, f"{name}_ev2r_4")
    spin(a, name, "p", 12, "s46", VZERO, 1, f"{name}_spin_p_ret")

def final2(a, name):
    T = VT
    RED = KB
    a(f"""
    s_xor_b32 s40, s20, 2
    s_lshl_b32 s40, s40, 14
    s_add_u32 s40, s40, {RED}
    v_add_u32 v{T}, s40, v{VL16}
    s_lshl_b32 s40, s20, 14
    s_add_u32 s40, s40, {RED}
    v_add_u32 v{T+2}, s40, v{VL16}
    s_cmp_eq_u32 s89, 0
    s_cbranch_scc1 {name}_red0
    """)
    for q in range(16): a(f"ds_write_b128 v{T}, {vr(4*q,4)} offset:{1024*q}")
    a("s_nop 1")
    for r in range(64): a(f"v_mov_b32 v{r}, v{64+r}")
    a(f"s_branch {name}_red1")
    a.label(f"{name}_red0")
    for q in range(16): a(f"ds_write_b128 v{T}, {vr(64+4*q,4)} offset:{1024*q}")
    a.label(f"{name}_red1")
    a("s_waitcnt lgkmcnt(0)")
    a("s_barrier")
    for q in range(16): a(f"ds_read_b128 {vr(64+4*q,4)}, v{T+2} offset:{1024*q}")
    a(f"""
    s_lshl_b32 s40, s2, 2
    s_add_u32 s40, s40, s20
    s_lshl_b32 s41, s40, 13
    s_add_u32 s41, s41, {PX_OFF}
    s_xor_b32 s42, s40, 4
    s_lshl_b32 s43, s42, 13
    s_add_u32 s43, s43, {PX_OFF}
    s_add_u32 s45, s57, 384
    s_xor_b32 s46, s45, 8192
    s_add_u32 s47, s41, 4096
    s_add_u32 s48, s43, 4096
    """)
    for q in range(16):
        if q % 4 == 0: a(f"s_waitcnt lgkmcnt({12 - q})")
        for r in range(4): a(f"v_add_f32 v{4*q+r}, v{4*q+r}, v{64+4*q+r}")
    stamp(a, 14)
    a(f"s_cmp_eq_u32 s62, 0")
    a(f"s_cbranch_scc1 {name}_x0")
    for n in range(4):
        for h in range(2):
            i = 2 * n + h
            a(f"buffer_store_dwordx4 {vr(16*n+4*h,4)}, v{VL16}, s[12:15], s{41 if i < 4 else 47} offen offset:{1024*(i%4)} sc1")
    a("s_nop 1")
    for n in range(4):
        for r in range(8): a(f"v_mov_b32 v{16*n+r}, v{16*n+8+r}")
    a(f"s_branch {name}_x1")
    a.label(f"{name}_x0")
    for n in range(4):
        for h in range(2):
            i = 2 * n + h
            a(f"buffer_store_dwordx4 {vr(16*n+8+4*h,4)}, v{VL16}, s[12:15], s{41 if i < 4 else 47} offen offset:{1024*(i%4)} sc1")
    a.label(f"{name}_x1")
    a(f"""
    s_waitcnt vmcnt(0)
    buffer_store_dword v{VONE}, v{VFL}, s[12:15], s45 offen sc1
    """)
    stamp(a, 15)
    srd(a, 16, 78, 2048*1024*2)
    a(f"""
    v_and_b32 v{T+2}, 15, v{VL}
    v_lshlrev_b32 v{T+2}, 11, v{T+2}
    v_bfe_u32 v{T+3}, v{VL}, 4, 1
    v_lshl_add_u32 v{T+2}, v{T+3}, 5, v{T+2}
    v_lshrrev_b32 v{T+3}, 5, v{VL}
    v_lshl_add_u32 v{T+2}, v{T+3}, 4, v{T+2}
    s_lshl_b32 s40, s60, 2
    s_lshl_b32 s41, s88, 1
    s_add_u32 s40, s40, s41
    s_add_u32 s40, s40, s62
    s_lshl_b32 s40, s40, 16
    s_lshl_b32 s41, s61, 8
    s_add_u32 s40, s40, s41
    s_lshl_b32 s41, s89, 7
    s_add_u32 s40, s40, s41
    s_add_u32 s41, s40, {16*2048}
    s_branch {name}_spin_p
    """)
    a.label(f"{name}_spin_p_ret")
    stamp(a, 16)
    for n in range(4):
        for h in range(2):
            i = 2 * n + h
            a(f"buffer_load_dwordx4 {vr(64+4*i,4)}, v{VL16}, s[12:15], s{43 if i < 4 else 48} offen offset:{1024*(i%4)} sc1")
    for np_ in range(2):
        a(f"s_waitcnt vmcnt({4 if np_ == 0 else 2})")
        for h in range(2):
            d = 96 + 8 * np_ + 4 * h
            for k in range(2):
                n = 2 * np_ + k
                r = 16 * n + 4 * h; s = 64 + 4 * (2 * n + h)
                for q in range(4): a(f"v_add_f32 v{r+q}, v{r+q}, v{s+q}")
                a(f"v_cvt_pk_bf16_f32 v{d+2*k}, v{r}, v{r+1}")
                a(f"v_cvt_pk_bf16_f32 v{d+2*k+1}, v{r+2}, v{r+3}")
            a(f"v_permlane16_swap_b32 v{d}, v{d+2}")
            a(f"v_permlane16_swap_b32 v{d+1}, v{d+3}")
            a(f"buffer_store_dwordx4 {vr(d,4)}, v{T+2}, s[16:19], s{40+h} offen offset:{64*np_}")
    if O.diag:
        a("s_waitcnt vmcnt(0)")
    stamp(a, 17)

def build():
    name = "fused_kernel"
    HDR = open("gated_mix__sliding_block__dense_activation_relu__prompt.s.ref").read().split("; Override launch")[0]
    a = Asm()
    kernel_begin(a, name)
    ool = []
    phase1(a, name)
    epilogue1(a, name)
    attention(a, name, ool)
    if O.stop != 'p1':
        phase2(a, name)
    dump(a)
    a.label(f"{name}_end")
    a("s_endpgm")
    phase1_w3(a, name)
    events1(a, name)
    spin(a, name, "kv", 12, "s49", VZERO, "s50", f"{name}_spin_kv_ret")
    if O.stop != 'p1':
        events2(a, name)
    for (l, r) in ool:
        a.label(l)
        a("s_nop 3")
        for q in range(4): a(f"v_mov_b32 v{VZ+q}, 0")
        a("s_nop 1")
        a(f"s_branch {r}")
    body = hazard.fix(a.lines, verbose=True)
    h = Asm()
    h.raw(HDR.rstrip("\n"))
    h.raw(f"; @launch kernel={name} grid=(256,1,1) block=(256,1,1) lds=163840")
    h.raw('.amdgcn_target "amdgcn-amd-amdhsa--gfx950"')
    h.lines += body
    kernel_desc(h, name, 512, 256)
    return h.text()

if __name__ == "__main__":
    for x in sys.argv[2:]:
        if x == "diag": O.diag = True
        if x == "p1": O.stop = 'p1'
        if x == "nopf": O.pf2 = False
        if x == "nopf1": O.pf1 = False
        if "=" in x: exec(x, globals())
    open(sys.argv[1], "w").write(build())
```

```python
import sys, struct
from asmlib import *
import hazard

A2_OFF = 0
KV_OFF = 0x1200000
PX_OFF = 0x1A00000
G_OFF  = 0x2200000
FL_OFF = 0x2204000
WS_USED = 0x2208000
DIAG_OFF = 0x2400000
MT_STRIDE = 144 * 1024

SLOT = 30720; NSLOT = 5
KB = 98304; VB = KB + 32768
NEG = 0xf149f2ca
CSC = 0.17677669529663687 * 1.4426950408889634
def f2u(x): return struct.unpack("<I", struct.pack("<f", x))[0]

class Opt:
    diag = False
    stop = None
    pf2 = True
    pf1 = True
O = Opt()

VL = 208; VD = 209; VXB = 219; VHB = 220; VQ0B = 221; VQ1B = 222
VXR = 223; VHR = 224; VQ0R = 225; VQ1R = 226
VG = 227; VOG = 231; VL16 = 235; VT = 236
VFL = 249; VONE = 250; VZERO = 251; VH = 252; VPA = 253; VPOLL = 254; VST = 255
QOFF = 16384; HOFF = 22528; GL = 153600
PFL = 12
PF0 = 3
MFMA = "v_mfma_f32_16x16x32_bf16"

nst = [0]
SS = 0; MINI = 0
def stamp(a, n):
    if not O.diag: return
    if SS and n >= 18: return
    if MINI and n not in (0, 9, 10, 11, 12, 13, 14, 17): return
    a(f"""
    s_memtime s[96:97]
    s_memrealtime s[98:99]
    s_waitcnt lgkmcnt(0)
    v_writelane_b32 v{VST}, s96, {2*n}
    v_writelane_b32 v{VST}, s98, {2*n+1}
    """)

def dump(a):
    if not O.diag: return
    a(f"""
    s_mov_b32 s14, 0x4000000
    s_lshl_b32 s40, s2, 2
    s_add_u32 s40, s40, s20
    s_lshl_b32 s40, s40, 8
    s_add_u32 s40, s40, {DIAG_OFF}
    v_lshlrev_b32 v{VT}, 2, v{VL}
    buffer_store_dword v{VST}, v{VT}, s[12:15], s40 offen
    """)

def srd(a, d, lo, nrec):
    a(f"""
    s_mov_b32 s{d}, s{lo}
    s_and_b32 s{d+1}, s{lo+1}, 0xffff
    s_mov_b32 s{d+2}, {nrec}
    s_mov_b32 s{d+3}, 0x20000
    """)

def emit_gaps(a, mf, fill):
    for m, ins in enumerate(mf):
        a(ins)
        for f in fill[m]:
            a(f)

def spin(a, name, tag, srdn, soff, vaddr, want, ret, cmp="v_cmp_ne_u32"):
    a.label(f"{name}_spin_{tag}")
    a("s_mov_b32 s93, 0")
    a.label(f"{name}_spinl_{tag}")
    a(f"""
    buffer_load_dword v{VPOLL}, v{vaddr}, s[{srdn}:{srdn+3}], {soff} offen sc1
    s_add_u32 s93, s93, 1
    s_waitcnt vmcnt(0)
    {cmp} vcc, {want}, v{VPOLL}
    s_cmp_gt_u32 s93, 0x40000
    s_cbranch_scc1 {ret}
    s_nop 1
    s_cbranch_vccnz {name}_spinl_{tag}
    s_branch {ret}
    """)

def lines(txt): return [l.strip() for l in txt.strip().split("\n") if l.strip()]
def xf(st, i): return st * 68 + 4 * i
def wf(st, t): return st * 68 + 16 + 4 * t
def acc1(t, m): return (t * 4 + m) * 4
SEC = {0: 1, 1: 1, 2: 2, 3: 2, 4: 0, 5: 0}
XSL = 32768; WB = 98304; WSL = 13312; HO = 6144; SCR = WB + 4 * WSL
VPF = 217; VXR1 = 218; VE = 252
XB = lambda D: (D % 3) * XSL

def reads1(n):
    st = n & 1; o = WSL * (n % 4); xb = XB(n >> 1)
    xr = [[VXB, VXR1], [VXR, VHR]][xb >> 16][n & 1]
    r = [f"ds_read_b128 {ar(xf(st,i),4)}, v{xr} offset:{(xb & 65535) + 2048*i} ; rd=X{n >> 1}" for i in range(4)]
    for t in range(13):
        for h in range(2):
            if t < 6:
                r.append(f"ds_read_b64_tr_b16 {ar(wf(st,t)+2*h,2)}, v{VQ0B + (t&1)} offset:{o + SEC[t]*1024 + h*512} ; rd=W{n}")
            else:
                r.append(f"ds_read_b64_tr_b16 {ar(wf(st,t)+2*h,2)}, v{VHB} offset:{o + h*1792 + (t-6)*32} ; rd=W{n}")
    return r

def mfmas1(st, czero=False):
    out = []
    for t in range(13):
        for m in range(4):
            D = vr(acc1(t, m), 4); W = ar(wf(st, t), 4); X = ar(xf(st, m), 4)
            C = "0" if czero else D
            if t in (2, 3): out.append(f"{MFMA} {D}, {X}, {W}, {C}")
            else: out.append(f"{MFMA} {D}, {W}, {X}, {C}")
    return out

def dmaX(h, D):
    g = [f"s_add_u32 m0, s55, {XB(D) + 4096*h}"]
    for p in range(4):
        g.append(f"buffer_load_dwordx4 v{VD+p}, s[4:7], s{31 if h else 23} offen offset:{1024*p} lds ; tag=X{D}")
    g.append(f"s_add_u32 s{31 if h else 23}, s{31 if h else 23}, 128")
    return g
def dmaW(n):
    g = [f"s_add_u32 m0, s32, {(n % 4) * WSL}"]
    for p in range(3):
        g.append(f"buffer_load_dwordx4 v{VD+4+p}, s[8:11], s24 offen offset:{1024*p} lds ; tag=W{n}")
    g += [f"s_mov_b32 m0, s{50 + n % 4}", f"buffer_load_dwordx4 v{VD+7}, s[8:11], s24 offen lds ; tag=W{n}", "s_add_u32 s24, s24, s27"]
    return g

class CK:
    land = {}; rd = {}
OPS = []
def emit(a, x):
    if x.startswith("%SYNC"):
        _, needs, lgk, bar = x.split()
        needs = needs.split(",")
        n = 63
        for t in needs:
            if t.startswith("old"): n = min(n, int(t[3:])); continue
            idx = [i for i, o in enumerate(OPS) if o == t]
            if idx: n = min(n, len(OPS) - 1 - max(idx))
        w = (f"vmcnt({n}) " if n < 63 else "") + (f"lgkmcnt({lgk})" if lgk != "-" else "")
        if w: a(f"s_waitcnt {w}")
        if bar == "1": a("s_barrier")
        for i, o in enumerate(OPS):
            if i < len(OPS) - n and CK.land.get(o, 0) < 1 and o not in OPS[max(0, len(OPS) - n):]: CK.land[o] = 1
        if lgk != "-":
            for t in CK.rd: CK.rd[t][1] = max(CK.rd[t][1], 1) if CK.rd[t][1] < 1 else CK.rd[t][1]
        if bar == "1":
            for t in CK.land: CK.land[t] = 2
            for t in CK.rd:
                if CK.rd[t][1] == 1: CK.rd[t][1] = 2
        return
    if x.startswith("buffer_"):
        t = x.split("tag=")[1] if "tag=" in x else "-"
        OPS.append(t)
        if t[0] in "WX" and int(t[1:]) >= (4 if t[0] == "W" else 3):
            old = t[0] + str(int(t[1:]) - (4 if t[0] == "W" else 3))
            assert CK.rd[old][0] == (26 if t[0] == "W" else 8) and CK.rd[old][1] >= (2 if t[0] == "W" else 1), ("overwrite", t, CK.rd[old])
    if "rd=" in x:
        t = x.split("rd=")[1]
        assert OPS.count(t) == (4 if t[0] == "W" else 8) and CK.land.get(t, 0) >= (2 if t[0] == "W" else 1), ("early read", t)
        c = CK.rd.setdefault(t, [0, 0]); c[0] += 1; c[1] = 0
    a(x)
def sync(needs, lgk, bar): return f"%SYNC {','.join(needs) if needs else '-'} {lgk} {bar}"

def cost(ins):
    if ins.endswith(":"): return 0
    if ins.startswith("%SYNC"): return 2
    if ins.startswith(("v_mfma", "v_exp", "v_rcp")): return 2
    if ins.startswith("buffer_"): return DMAC
    return 1
DMAC = 2

def spread(fill, seq, lo, hi):
    n = sum(1 for x in seq if x.startswith("buffer_"))
    k = 0; last = lo - 1
    pre = []
    for x in seq:
        if x.startswith("buffer_"):
            pos = max(lo + (k * (hi - lo)) // n, last); k += 1
            for y in pre: fill[max(pos - 1, last)].append(y)
            pre = []
            fill[pos].append(x); last = pos
        elif "m0" in x.split(",")[0] or x.endswith("; m0"):
            pre.append(x)
        else:
            last = last + 1
            fill[last].append(x)
    assert not pre

def stream(fill, q, lo=0, hi=None, cap=2):
    for gi in range(lo, hi if hi is not None else len(fill)):
        c = sum(cost(x) for x in fill[gi])
        while q:
            if q[0].startswith("@"):
                if gi < int(q[0][1:]): break
                q.pop(0); continue
            if c + cost(q[0]) > cap: break
            x = q.pop(0); c += cost(x); fill[gi].append(x)

BAR = 47
MLO = 4; MHI = 44
RDPOS = lambda k: k + k // 4
def step1(a, n, rdpos=None, mem=(), extra=(), q=None, qlo=0, mlo=None, mhi=None, first=()):
    extra = list(extra)
    if O.diag and SS and n < 28: extra.append((BAR - 1, "s_memtime s[96:97]"))
    if O.diag and SS and 1 <= n < 29: extra.append((20, f"v_writelane_b32 v{VST}, s96, {35 + n}"))
    mf = mfmas1(n & 1, n == 0)
    fill = [[] for _ in mf]
    for pos, ins in first: fill[pos].append(ins)
    if rdpos:
        for k, r in enumerate(reads1(n + 1)): fill[rdpos(k)].append(r)
    if mem: spread(fill, list(mem), MLO if mlo is None else mlo, mhi or MHI)
    for pos, ins in extra: fill[pos].append(ins)
    if q is not None: stream(fill, q, qlo, 52)
    for m, ins in enumerate(mf):
        a(ins)
        for f in fill[m]: emit(a, f)

def lds_bases(a):
    T = VT
    a(f"""
    v_and_b32 v{T}, 15, v{VL}
    v_lshlrev_b32 v{T+1}, 7, v{T}
    v_lshrrev_b32 v{T+2}, 4, v{VL}           ; G
    v_and_b32 v{T+3}, 7, v{VL}
    v_xor_b32 v{T+3}, v{T+3}, v{T+2}
    v_lshl_add_u32 v{T+1}, v{T+3}, 4, v{T+1}
    v_add_u32 v{VXB}, s55, v{T+1}
    v_bfe_u32 v{T+3}, v{VL}, 2, 2            ; i>>2
    v_bfe_u32 v{T+4}, v{VL}, 4, 1            ; G&1
    v_lshl_add_u32 v{T+3}, v{T+4}, 2, v{T+3} ; (G&1)*4 + (i>>2)
    v_lshrrev_b32 v{T+5}, 5, v{VL}           ; G>>1
    v_and_b32 v{T+6}, 3, v{VL}
    v_lshlrev_b32 v{T+6}, 3, v{T+6}          ; (i&3)*8
    v_lshl_add_u32 v{T+7}, v{T+5}, 4, v{T+3}
    v_mul_u32_u24 v{T+7}, 224, v{T+7}
    v_add_u32 v{VHB}, v{T+7}, v{T+6}
    v_add_u32 v{VHB}, {WB + HO}, v{VHB}
    v_mul_u32_u24 v{T+7}, 3072, v{T+5}
    v_lshl_add_u32 v{T+7}, v{T+3}, 6, v{T+7}
    v_lshl_add_u32 v{T+7}, v{T+4}, 5, v{T+7}
    v_add_u32 v{T+7}, v{T+7}, v{T+6}
    v_add_u32 v{VQ0B}, {WB}, v{T+7}
    v_xor_b32 v{VQ1B}, 32, v{VQ0B}
    v_add_u32 v{VXR}, 0x10000, v{VXB}
    v_xor_b32 v{VXR1}, 64, v{VXB}
    v_xor_b32 v{VHR}, 64, v{VXR}
    s_lshl_b32 s42, s28, 5
    s_add_u32 s42, s42, s29          ; rb*32+j
    s_lshl_b32 s63, s42, 15
    s_add_u32 s63, s63, {KV_OFF}
    s_lshl_b32 s57, s28, 2
    s_add_u32 s57, s57, s20
    s_lshl_b32 s57, s57, 7
    s_add_u32 s57, s57, s29
    s_lshl_b32 s57, s57, 2
    s_add_u32 s57, s57, {FL_OFF}
    s_lshl_b32 s48, s42, 3
    s_lshl_b32 s41, s20, 1
    s_add_u32 s48, s48, s41
    s_lshl_b32 s49, s48, 11
    """)
    srd(a, 12, 82, WS_USED)

OOB = 0x40000000
NPX = 2
NPC = 2
X2M = 1
XL2 = (2, 4)
X1N = 2
def pf_rows(a, stride, nl, sec):
    T = VT
    a(f"""
    v_and_b32 v{T}, 15, v{VL}
    v_lshrrev_b32 v{T+1}, 4, v{VL}
    v_mov_b32 v{T+5}, {OOB}
    """)
    if sec:
        a(f"""
        v_lshrrev_b32 v{T+2}, 2, v{T}
        v_and_b32 v{T+3}, 3, v{T}
        v_lshlrev_b32 v{T+2}, 11, v{T+2}
        v_lshl_add_u32 v{T+2}, v{T+3}, 7, v{T+2}
        s_lshl_b32 s42, s43, 9
        """)
    else:
        a(f"""
        v_lshlrev_b32 v{T+2}, 7, v{T}
        s_mul_i32 s42, s43, 1792
        """)
    a(f"""
    v_cmp_gt_u32 vcc, {nl}, v{T}
    v_add_u32 v{T+2}, s42, v{T+2}
    v_lshl_add_u32 v{T+3}, v{T+1}, 5, s41          ; row = i + 32 r
    s_add_u32 s42, s46, {(32 * NPX - 64 * NPX) & 0xffffffff}
    v_cndmask_b32 v{T+2}, v{T+5}, v{T+2}, vcc
    v_cmp_gt_u32 vcc, {NPX}, v{T+1}
    v_lshl_add_u32 v{T+4}, v{T+1}, 6, s42
    v_cndmask_b32 v{T+3}, v{T+4}, v{T+3}, vcc
    v_cmp_gt_u32 vcc, {NPX + NPC}, v{T+1}
    v_mul_u32_u24 v{T+3}, {stride}, v{T+3}
    v_add_u32 v{T+3}, v{T+3}, v{T+2}
    v_cndmask_b32 v{VPF}, v{T+5}, v{T+3}, vcc
    """)

def xpf(a, l0, n):
    T = VT
    a(f"""
    v_and_b32 v{T}, 31, v{VL}
    v_lshlrev_b32 v{T}, 11, v{T}
    v_lshrrev_b32 v{T+1}, 5, v{VL}
    v_lshl_add_u32 v{T}, v{T+1}, {7 if n == 2 else 30}, v{T}
    s_and_b32 s44, s2, 1
    s_lshl_b32 s44, s44, 21
    s_lshl_b32 s42, s41, 16
    s_add_u32 s44, s44, s42
    s_add_u32 s44, s44, {128 * l0}
    v_add_u32 v{VPF}, s44, v{T}
    """)

RND = 129024
class SP:
    L = []
def sp_build():
    R0 = 32 * NPX + 64 * NPC
    L = []
    for (reg, rows, stride) in ((60, 21, 6144), (94, 18, 7168)):
        r = R0; base = 0
        while r < 1024:
            r = min(r, 1024 - rows)
            off = r * stride
            pre = []
            if off - base >= 1 << 20:
                d = off - base
                pre = [f"s_add_u32 s{reg}, s{reg}, {d}", f"s_addc_u32 s{reg+1}, s{reg+1}, 0"]; base = off
            L.append((r, pre + [f"s_load_dwordx2 s[100:101], s[{reg}:{reg+1}], {off - base}"]))
            r += rows
    L.sort(key=lambda x: x[0])
    L = [x[1] for x in L] if O.pf1 else []
    SP.nw = len(L)
    if O.pf2:
        base = 0
        for n in range(W2S):
            for h in range(2):
                off = n * 65536 + 128 * h; pre = []
                if off - base >= 1 << 20:
                    pre = [f"s_add_u32 s88, s88, {off - base}", "s_addc_u32 s89, s89, 0"]; base = off
                L.append(pre + [f"s_load_dwordx2 s[100:101], s[88:89], {off - base}"])
    SP.L = L
def sp_take(k):
    r = SP.L[:k]; SP.L = SP.L[k:]
    return r
W2V = 1
W2S = 12
SPP = 7
SPK = lambda s: 3
SPE = (4, 7)

def prologue(a, name):
    a(f"""
    s_cmp_ge_u32 s2, 256
    s_cbranch_scc1 {name}_end
    s_load_dwordx16 s[64:79], s[0:1], 0
    s_load_dwordx4 s[80:83], s[0:1], 64
    v_lshrrev_b32 v1, 6, v0
    v_and_b32 v{VL}, 63, v0
    s_and_b32 s40, s2, 7
    v_readfirstlane_b32 s20, v1
    s_lshr_b32 s41, s2, 3            ; i
    s_and_b32 s28, s40, 1
    s_lshl_b32 s46, s41, 1
    s_add_u32 s46, s46, s28          ; 2i + (c&1)
    s_lshl_b32 s28, s28, 2
    s_and_b32 s42, s41, 3
    s_add_u32 s28, s28, s42          ; rb
    s_lshr_b32 s43, s40, 1           ; quarter
    s_lshl_b32 s29, s43, 3
    s_lshr_b32 s42, s41, 2
    s_add_u32 s29, s29, s42          ; j
    """)
    if O.diag: a(f"v_mov_b32 v{VST}, 0")
    stamp(a, 0)
    T = VT
    a(f"""
    s_mov_b32 s23, 0
    s_mov_b32 s31, 65536
    s_lshl_b32 s55, s20, 13
    v_lshrrev_b32 v{T}, 3, v{VL}
    v_and_b32 v{T+1}, 7, v{VL}
    v_xor_b32 v{T+1}, v{T+1}, v{T}
    v_lshlrev_b32 v{T}, 11, v{T}
    v_lshl_add_u32 v{T}, v{T+1}, 4, v{T}
    s_lshl_b32 s44, s28, 19
    s_lshl_b32 s45, s20, 17
    s_add_u32 s44, s44, s45
    v_add_u32 v{VD}, s44, v{T}
    """)
    for p in range(1, 4):
        a(f"v_add_u32 v{VD+p}, {p*16384 - 1024*p}, v{VD}")
    a(f"""
    s_mov_b32 s7, 0x20000
    s_mov_b32 s11, 0x20000
    s_mov_b32 s6, {2048*1024*2}
    s_lshl_b32 s47, s46, 2
    s_add_u32 s47, s47, s20
    s_min_u32 s47, s47, 251
    s_mul_i32 s48, s47, 171
    s_lshr_b32 s48, s48, 11          ; u / 12
    s_mul_i32 s49, s48, 12
    s_sub_u32 s49, s47, s49          ; u % 12
    s_mul_i32 s48, s48, 6144
    s_lshr_b32 s50, s49, 2
    s_lshl_b32 s50, s50, 11
    s_add_u32 s48, s48, s50
    s_and_b32 s49, s49, 3
    s_lshl_b32 s50, s43, 2
    s_add_u32 s49, s49, s50
    s_lshl_b32 s49, s49, 7
    s_add_u32 s48, s48, s49
    s_add_u32 s48, s48, 60
    s_mul_i32 s49, s47, 293
    s_lshr_b32 s49, s49, 12          ; u / 14
    s_mul_i32 s50, s49, {7168 - 14*128}
    s_lshl_b32 s49, s47, 7
    s_add_u32 s49, s49, s50
    s_mul_i32 s50, s43, 1792
    s_add_u32 s49, s49, s50
    s_add_u32 s49, s49, 60           ; w1 offset
    s_cmp_ge_u32 s20, 2
    s_cbranch_scc1 {name}_pa2
    s_mov_b32 s10, {1024*3072*2}
    s_cmp_eq_u32 s20, 1
    s_cbranch_scc1 {name}_pa1
    """)
    pf_rows(a, 6144, 12, True)
    a(f"""
    s_waitcnt lgkmcnt(0)
    s_mov_b32 s8, s66
    s_and_b32 s9, s67, 0xffff
    buffer_load_dword v{VPOLL}, v{VPF}, s[8:11], 0 offen
    s_mov_b32 s4, s64
    s_and_b32 s5, s65, 0xffff
    s_branch {name}_pb
    """)
    a.label(f"{name}_pa1")
    xpf(a, 0, X1N)
    a(f"""
    s_waitcnt lgkmcnt(0)
    s_mov_b32 s4, s64
    s_and_b32 s5, s65, 0xffff
    buffer_load_dword v{VPOLL}, v{VPF}, s[4:7], 0 offen
    s_mov_b32 s8, s66
    s_and_b32 s9, s67, 0xffff
    s_branch {name}_pb
    """)
    a.label(f"{name}_pa2")
    a(f"""
    s_mov_b32 s10, {1024*3584*2}
    s_cmp_eq_u32 s20, 3
    s_cbranch_scc1 {name}_pa3
    """)
    if X2M == 2: xpf(a, 2, 2)
    elif X2M == 1:
        a(f"""
        v_and_b32 v{T}, 7, v{VL}
        v_lshlrev_b32 v{T}, 11, v{T}
        v_lshrrev_b32 v{T+1}, 3, v{VL}
        v_lshl_add_u32 v{T}, v{T+1}, 7, v{T}
        s_lshl_b32 s44, s28, 19
        s_lshl_b32 s42, s29, 14
        s_add_u32 s44, s44, s42
        s_add_u32 s44, s44, {128 * XL2[0]}
        v_cmp_gt_u32 vcc, {XL2[1] - XL2[0]}, v{T+1}
        v_add_u32 v{T}, s44, v{T}
        v_mov_b32 v{T+1}, {OOB}
        v_cndmask_b32 v{VPF}, v{T+1}, v{T}, vcc
        """)
    else: a(f"v_mov_b32 v{VPF}, {OOB}")
    a(f"""
    s_waitcnt lgkmcnt(0)
    s_mov_b32 s4, s64
    s_and_b32 s5, s65, 0xffff
    buffer_load_dword v{VPOLL}, v{VPF}, s[4:7], 0 offen
    s_mov_b32 s8, s72
    s_and_b32 s9, s73, 0xffff
    s_branch {name}_pb
    """)
    a.label(f"{name}_pa3")
    pf_rows(a, 7168, 14, False)
    a(f"""
    s_waitcnt lgkmcnt(0)
    s_mov_b32 s8, s72
    s_and_b32 s9, s73, 0xffff
    buffer_load_dword v{VPOLL}, v{VPF}, s[8:11], 0 offen
    s_mov_b32 s4, s64
    s_and_b32 s5, s65, 0xffff
    """)
    a.label(f"{name}_pb")
    OPS.append("-")
    stamp(a, 18)
    for x in dmaX(0, 0): emit(a, x)
    a(f"""
    s_add_u32 s60, s66, s48
    s_addc_u32 s61, s67, 0
    s_add_u32 s94, s72, s49
    s_addc_u32 s95, s73, 0
    """)
    for g in sp_take(SPP):
        for x in g: a(x)
    a(f"""
    s_mov_b32 s24, 0
    s_mov_b32 s50, {SCR}
    s_mov_b32 s51, {SCR}
    s_mov_b32 s52, {SCR}
    s_mov_b32 s53, {SCR}
    v_mov_b32 v{VD+7}, {OOB}
    s_cmp_ge_u32 s20, 2
    s_cbranch_scc1 {name}_ph
    v_lshrrev_b32 v{T}, 2, v{VL}
    v_and_b32 v{T+1}, 3, v{VL}
    v_and_b32 v{T+3}, 3, v{T}
    v_bfe_u32 v{T+4}, v{T}, 2, 1
    v_lshl_add_u32 v{T+3}, v{T+4}, 3, v{T+3}
    v_bfe_u32 v{T+5}, v{T}, 3, 1
    v_lshl_add_u32 v{T+3}, v{T+5}, 2, v{T+3}   ; k low
    v_mul_u32_u24 v{T+3}, 6144, v{T+3}
    v_lshlrev_b32 v{T+4}, 1, v{T+4}
    v_xor_b32 v{T+2}, v{T+1}, v{T+4}
    v_lshl_add_u32 v{T+3}, v{T+2}, 4, v{T+3}
    s_lshl_b32 s42, s29, 6
    s_mul_i32 s44, s20, {16*6144}
    s_add_u32 s42, s42, s44
    v_add_u32 v{VD+4}, s42, v{T+3}
    v_add_u32 v{VD+5}, 1024, v{VD+4}
    v_add_u32 v{VD+6}, 2048, v{VD+4}
    s_mov_b32 s27, {32*6144}
    s_mul_i32 s32, s20, 3072
    s_add_u32 s32, s32, {WB}
    s_branch {name}_pdone
    """)
    a.label(f"{name}_ph")
    a(f"""
    s_lshl_b32 s45, s20, 8
    s_sub_u32 s45, s45, 512
    s_mul_i32 s42, s29, 224
    s_movk_i32 s46, 4682
    """)
    for p in range(4):
        a(f"""
        s_add_u32 s44, s45, {64*p}
        v_add_u32 v{T}, s44, v{VL}
        v_mul_u32_u24 v{T+1}, s46, v{T}
        v_lshrrev_b32 v{T+1}, 16, v{T+1}        ; rho
        v_mul_u32_u24 v{T+2}, 14, v{T+1}
        v_sub_u32 v{T+2}, v{T}, v{T+2}          ; chunk
        v_and_b32 v{T+3}, 0x13, v{T+1}
        v_bfe_u32 v{T+4}, v{T+1}, 2, 1
        v_lshl_add_u32 v{T+3}, v{T+4}, 3, v{T+3}
        v_bfe_u32 v{T+4}, v{T+1}, 3, 1
        v_lshl_add_u32 v{T+3}, v{T+4}, 2, v{T+3}   ; k
        v_mul_u32_u24 v{T+3}, 7168, v{T+3}
        v_lshl_add_u32 v{T+3}, v{T+2}, 4, v{T+3}
        s_sub_u32 s44, s42, {1024*p if p < 3 else 0}
        v_add_u32 v{VD+4+p}, s44, v{T+3}
        """)
        if p == 2:
            a(f"""
            s_mov_b32 s27, {32*7168}
            s_lshl_b32 s32, s20, 12
            s_add_u32 s32, s32, {WB + HO - 8192}
            s_cmp_eq_u32 s20, 3
            s_cbranch_scc1 {name}_pdone
            """)
    for k in range(4): a(f"s_mov_b32 s{50+k}, {WB + HO + 3072 + k*WSL}")
    a.label(f"{name}_pdone")
    a(f"v_lshlrev_b32 v{VL16}, 4, v{VL}")

def nmem(L): return sum(1 for x in L if x.startswith("buffer_"))

GA = 136; GD = 168
def gate_loads(h):
    return [f"buffer_load_dwordx4 {ar(GA+4*h,4)}, v{VL16}, s[84:87], 0 offen offset:{1024*h} ; tag=G{h}",
            f"buffer_load_dwordx4 {ar(GA+8+4*h,4)}, v{VL16}, s[4:7], s49 offen offset:{1024*h} ; tag=G{h}",
            f"buffer_load_dwordx4 {ar(GA+16+4*h,4)}, v{VL16}, s[4:7], s49 offen offset:{2048+1024*h} ; tag=G{h}"]

def gate_stream():
    PK = [228, 240]; ON = VT; g = [232, 233, 227]; t = [244, 245, 246, 247, 248, 234]
    q = []
    for r in range(4): q.append(f"v_mov_b32 v{ON+r}, 0x3f803f80")
    mf = lambda r, first: f"{MFMA} {ar(GD+4*r,4)}, {vr(ON,4)}, {vr(PK[r],4)}, {'0' if first else ar(GD+4*r,4)}"
    for d in range(8):
        q += [f"v_accvgpr_read_b32 v{g[2]}, a{GA+d}", f"v_lshlrev_b32 v{g[0]}, 16, v{g[2]}", f"v_and_b32 v{g[1]}, 0xffff0000, v{g[2]}"]
        if d == 4: q += [mf(0, True), mf(1, True)]
        for r in range(2):
            x, lo, hi = t[3*r:3*r+3]
            q += [f"v_accvgpr_read_b32 v{x}, a{GA+8+8*r+d}", f"v_lshlrev_b32 v{lo}, 16, v{x}", f"v_and_b32 v{hi}, 0xffff0000, v{x}",
                  f"v_mul_f32 v{lo}, v{lo}, v{g[0]}", f"v_mul_f32 v{hi}, v{hi}, v{g[1]}",
                  f"v_cvt_pk_bf16_f32 v{PK[r]+(d&3)}, v{lo}, v{hi}"]
        if d == 3: q.append("#half")
    E = 232; A = 244
    q += ["s_lshl_b32 s48, s48, 2", f"s_add_u32 s48, s48, {G_OFF}", mf(0, False), mf(1, False)]
    q += [f"v_lshrrev_b32 v{A}, 3, v{VL}", f"v_lshlrev_b32 v{A+1}, 7, v{VL}", f"v_mov_b32 v{VZERO}, 0",
          f"v_mov_b32 v{A+2}, {OOB}", f"v_and_b32 v{A+3}, 31, v{VL}", f"v_cmp_eq_u32 vcc, 0, v{A+3}",
          f"v_cmp_gt_u32 s[40:41], 4, v{VL}", f"v_cndmask_b32 v{A}, v{A+2}, v{A}, vcc", f"v_cndmask_b32 v{A+1}, v{A+2}, v{A+1}, s[40:41]",
          f"v_cmp_eq_u32 vcc, 0, v{VL}", f"v_mov_b32 v{VONE}, 1", f"v_cndmask_b32 v{VFL}, v{A+2}, 0, vcc",
          f"buffer_store_dword v{VZERO}, v{A+1}, s[12:15], s57 offen sc1 ; tag=S",
          f"v_and_b32 v{VPA}, 7, v{VL}", f"v_lshlrev_b32 v{VPA}, 5, v{VPA}"]
    q += [f"v_accvgpr_read_b32 v{E}, a{GD}", f"v_accvgpr_read_b32 v{E+1}, a{GD+4}", "s_nop 0",
          f"v_mov_b32_dpp v{E}, v{E+1} quad_perm:[0,1,2,3] row_mask:0xc bank_mask:0xf"]
    for sh in (8, 4, 2, 1):
        q += ["s_nop 0", f"v_add_f32_dpp v{E}, v{E}, v{E} row_ror:{sh} row_mask:0xf bank_mask:0xf"]
    q += lines(f"""
    v_cvt_pk_bf16_f32 v{E}, v{E}, v{E}
    v_lshlrev_b32 v{E}, 16, v{E}
    v_mul_f32 v{E}, 0xbfb8aa3b, v{E}
    v_exp_f32 v{E}, v{E}
    v_add_f32 v{E}, 1.0, v{E}
    v_rcp_f32 v{E}, v{E}
    v_cvt_pk_bf16_f32 v{E}, v{E}, v{E}
    v_lshlrev_b32 v{E}, 16, v{E}
    buffer_store_dword v{E}, v{A}, s[12:15], s48 offen sc1 ; tag=S
    """)
    i = q.index("#half")
    return q[:i], q[i+1:]

GST = (5, 10)
SIG = 17; POLL = 21; CHK = 24
RAMP = {-2: "W0 X0.1", -1: "W1 X1.0 X1.1 W2", 0: "W3 X2.0 X2.1", 1: "W4 G0 W5", 2: "X3.0 X3.1 W6", 3: "W7 X4.0"}
GLD = {7: "G1"}
PW = 6
B0 = 21; B1 = 17
def sched(s):
    if s in RAMP: return RAMP[s].split()
    L = []
    if s + 4 < 32: L.append(f"W{s+4}")
    if (s + 5) >> 1 < 16: L.append(f"X{(s+5)>>1}.{(s+1)&1}")
    if s in GLD: L.append(GLD[s])
    return L
def dma(t):
    if t[0] == "W": return dmaW(int(t[1:]))
    if t[0] == "G": return gate_loads(int(t[1:]))
    D, h = t[1:].split(".")
    return dmaX(int(h), int(D))
def issue(s): return [x for t in sched(s) for x in dma(t)]

def phase1(a, name):
    sp_build()
    print("scalar prefetch loads:", SP.nw, len(SP.L))
    prologue(a, name)
    for x in issue(-2): emit(a, x)
    stamp(a, 19)
    lds_bases(a)
    srd(a, 36, 80, 256)
    srd(a, 84, 76, 2048)
    a(f"""
    s_cmp_eq_u32 s20, 0
    s_cselect_b32 s38, 256, 0
    s_cselect_b32 s33, 32, 0
    s_lshr_b32 s40, s2, 1
    s_lshl_b32 s40, s40, 2
    s_add_u32 s40, s40, s20
    s_and_b32 s41, s40, 255
    s_lshl_b32 s41, s41, 8
    s_lshr_b32 s40, s40, 8
    s_and_b32 s42, s2, 1
    s_lshl_b32 s42, s42, 1
    s_add_u32 s40, s40, s42          ; quarter
    s_lshl_b32 s22, s40, 19
    s_lshl_b32 s42, s41, 3
    s_add_u32 s22, s22, s42
    s_mul_i32 s40, s40, {28*65536}
    s_mul_i32 s21, s41, {28 - W2S}
    s_add_u32 s21, s21, s40
    s_add_u32 s21, s21, {W2S * 65536}
    s_add_u32 s40, s40, s41
    s_add_u32 s40, s40, 60
    s_add_u32 s88, s74, s40
    s_addc_u32 s89, s75, 0
    """)
    stamp(a, 1)
    a(f"s_waitcnt vmcnt({PW})")
    for x in issue(-1): emit(a, x)
    stamp(a, 2)
    emit(a, sync(["W0", "X0"], "-", 1))
    stamp(a, 3)
    stamp(a, 4)
    rd = reads1(0)
    for r in rd[:12]: emit(a, r)
    q0, q1 = gate_stream()
    q = []
    T = VT
    lgk = 0
    for s in range(31):
        mem = issue(s)
        ex = []; first = []
        rdpos = RDPOS; mlo = None; mhi = None
        n = nmem(mem)
        if n < 8: mhi = MLO + 5 * n
        if s == 0:
            a("s_waitcnt lgkmcnt(6)")
            for k in range(18): first.append((k // 2, rd[12 + k]))
            for t in range(1, 6):
                issued = min(30, 12 + 8 * t)
                ex.append((4 * t - 1, f"s_waitcnt lgkmcnt({max(0, min(12, issued - (6 + 2 * t)) if t < 5 else 0)})"))
            ex.append((B0, sync(["W1"], 0, 1)))
            rdpos = lambda k: B0 + 1 + (k * (BAR - 3 - B0)) // 30
        if s == 1:
            ex.append((B1, sync(["W2", "X1"], "-", 1)))
            rdpos = lambda k: B1 + 1 + (k * (BAR - 8 - B1)) // 30
        if s == GST[0]: q += q0
        if s == GST[1]: q += q1
        if s == SIG - 1: assert not q and s > GST[1], "gate stream too late"
        if s == SIG:
            q += ["s_lshl_b32 s40, s28, 5", f"buffer_atomic_add v{VONE}, v{VFL}, s[36:39], s40 offen sc1"]
        if s == POLL:
            mem = [f"buffer_load_dword v{VPOLL}, v{VPA}, s[36:39], 0 offen sc1 ; tag=P"] + mem
        if s == CHK:
            ex += [(BAR - 8, f"v_cmp_ne_u32 vcc, s33, v{VPOLL}"), (BAR - 7, "s_lshl_b32 s40, s28, 10"), (BAR - 6, f"s_add_u32 s46, s40, {G_OFF}"),
                   (BAR - 2, f"s_cbranch_vccnz {name}_spin_g"), (BAR - 2, f"{name}_spin_g_ret:")]
        if s == CHK + 1:
            mem = [f"s_mov_b32 m0, {GL}", f"buffer_load_dwordx4 v{VL16}, s[12:15], s46 offen sc1 lds ; tag=g"] + mem
        need = [f"W{s+2}", f"X{(s+2)>>1}"] + [f"G{h}" for h in range(2) if GST[h] == s + 1]
        if s == 0: need = []
        if s == 1: need = ["W3"]
        if s == CHK - 1: need.append("P")
        if s == 29: need.append("g")
        if s == SIG - 1: need.append("S")
        if s == 30:
            stamp(a, 5)
            ex += [(31, f"v_and_b32 v{T}, 15, v{VL}"), (31, f"v_lshlrev_b32 v{T}, 2, v{T}"),
                  (32, "s_lshl_b32 s40, s20, 8"), (33, f"v_add_u32 v{T}, s40, v{T}"), (33, f"v_add_u32 v{T}, {GL}, v{T}")]
            for m in range(4):
                ex.append((37 + m, f"ds_read_b32 v{VG+m}, v{T} offset:{64*m}"))
        d0 = 41 if s == 30 else rdpos(29) + 1
        for i in range(lgk): ex.append((min(d0 + i, BAR - 1), f"ds_read_b32 v{VPF}, v{VXB}"))
        ex.append((BAR, sync(need, lgk, 0 if s == 0 else 1)))
        sp = sp_take(SPK(s))
        for i, g in enumerate(sp):
            for x in g: ex.append((BAR + 1 + i, x))
        lgk = 2 * len(sp)
        step1(a, s, rdpos=rdpos, mem=mem, q=q, extra=ex, first=first, mlo=mlo, mhi=mhi)
        if len(SP.L) <= (2 * W2S if O.pf2 else 0) and not getattr(SP, "done", 0): SP.done = 1; print("W stream done at step", s)
    assert not q
    q = kv_stream()
    step1(a, 31, q=q, qlo=0)
    for x in q: a(x)
    stamp(a, 6)
    print("scalar prefetch left after phase 1:", len(SP.L))

def events1(a, name):
    spin(a, name, "g", 36, "0", VPA, "s33", f"{name}_spin_g_ret")

QR = 144; OA = 160; MU = 184; MD = 188; VZ = 192; ONES = 196; VMA = 200; VMB = 201; VTM = 202; VKR = 204; VH32 = 205
KST = 160


def kv_stream():
    T = VT
    q = lines(f"""
    s_lshl_b32 s40, s20, 12
    s_add_u32 s41, s63, s40
    s_add_u32 s42, s40, {KB + 16384}
    v_add_u32 v{T}, s42, v{VL16}
    s_add_u32 s43, s41, 16384
    """)
    for m in range(4):
        q += lines(f"""
        v_sub_f32 v{VOG+m}, 1.0, v{VG+m}
        v_cvt_pk_bf16_f32 v{VOG+m}, v{VOG+m}, v{VOG+m}
        v_lshlrev_b32 v{VOG+m}, 16, v{VOG+m}
        """)
    q.append("@9")
    for m in range(4):
        k0 = acc1(0, m); k1 = acc1(1, m)
        q += lines(f"""
        v_cvt_pk_bf16_f32 v{k0}, v{k0}, v{k0+1}
        v_cvt_pk_bf16_f32 v{k0+1}, v{k0+2}, v{k0+3}
        v_cvt_pk_bf16_f32 v{k0+2}, v{k1}, v{k1+1}
        v_cvt_pk_bf16_f32 v{k0+3}, v{k1+2}, v{k1+3}
        buffer_store_dwordx4 {vr(k0,4)}, v{VL16}, s[12:15], s41 offen offset:{1024*m} sc1
        ds_write_b128 v{T}, {vr(k0,4)} offset:{1024*m}
        """)
    for p in range(2):
        for dt in range(2):
            r = acc1(2 + dt, 2 * p)
            q += lines(f"""
            v_cvt_pk_bf16_f32 v{r}, v{r}, v{r+1}
            v_cvt_pk_bf16_f32 v{r+1}, v{r+2}, v{r+3}
            v_cvt_pk_bf16_f32 v{r+2}, v{r+4}, v{r+5}
            v_cvt_pk_bf16_f32 v{r+3}, v{r+6}, v{r+7}
            buffer_store_dwordx4 {vr(r,4)}, v{VL16}, s[12:15], s43 offen offset:{1024*(2*p+dt)} sc1
            ds_write_b128 v{T}, {vr(r,4)} offset:{32768 + 1024*(2*p+dt)}
            """)
    q += lines(f"""
    v_lshrrev_b32 v{T+1}, 5, v{VL}
    v_mul_u32_u24 v{T+1}, {MT_STRIDE}, v{T+1}
    v_and_b32 v{T+2}, 31, v{VL}
    v_lshl_add_u32 v{VH}, v{T+2}, 4, v{T+1}
    s_lshl_b32 s44, s28, 4
    s_lshl_b32 s45, s20, 2
    s_add_u32 s44, s44, s45
    s_mul_i32 s44, s44, {MT_STRIDE}
    s_mul_i32 s45, s29, 7
    v_cmp_eq_u32 vcc, 0, v{VL}
    v_mov_b32 v{VONE}, 1
    v_mov_b32 v{VZERO}, 0
    v_mov_b32 v{VFL}, 0x40000000
    v_cndmask_b32 v{VFL}, v{VFL}, 0, vcc
    """)
    q += h_valu(0)
    return q

def h_valu(t):
    q = []
    for p in range(2):
        r = acc1(6 + t, 2 * p)
        for h in range(2):
            for k in range(4):
                q.append(f"v_mul_f32 v{r+4*h+k}, v{r+4*h+k}, v{VOG+2*p+h}")
        for k in range(4):
            q.append(f"v_cvt_pk_bf16_f32 v{r+k}, v{r+2*k}, v{r+2*k+1}")
        for k in range(4):
            q.append(f"v_pk_max_i16 v{r+k}, v{r+k}, 0")
    for p in range(2):
        r = acc1(6 + t, 2 * p)
        q.append(f"v_permlane32_swap_b32 v{r}, v{r+2}")
        q.append(f"v_permlane32_swap_b32 v{r+1}, v{r+3}")
    return q

def h_addr(t):
    return lines(f"""
        s_add_u32 s46, s45, {t}           ; T
        s_mul_i32 s48, s46, 1171
        s_lshr_b32 s48, s48, 16           ; T/56
        s_lshl_b32 s48, s48, 4
        s_add_u32 s46, s46, s48           ; T + 16*(T/56)
        s_lshl_b32 s46, s46, 9
        s_add_u32 s46, s46, s44
        s_add_u32 s48, s46, {2*MT_STRIDE}
        """)
def h_store(t, p, agpr=None):
    r = acc1(6 + t, 2 * p)
    src = vr(r, 4) if agpr is None else ar(agpr, 4)
    return f"buffer_store_dwordx4 {src}, v{VH}, s[12:15], s{46+2*p} offen sc1"
HA = 2; HB = 4
def h_late():
    q = []
    for t in range(HB, 7):
        q += h_addr(t) + [h_store(t, p, 8 * t + 4 * p) for p in range(2)]
    return q

def spe(a, i):
    for g in sp_take(SPE[i]):
        for x in g: a(x)
def w2vec():
    if not O.pf2: return []
    return lines(f"""
    v_lshlrev_b32 v207, 7, v{VL}
    v_cmp_gt_u32 vcc, {2 * (28 - W2S)}, v{VL}
    v_mov_b32 v205, {OOB}
    s_mov_b32 s16, s68
    v_cndmask_b32 v206, v205, v207, vcc
    v_cmp_gt_u32 vcc, 16, v{VL}
    s_and_b32 s17, s69, 0xffff
    s_mov_b32 s18, {1024*2048}
    v_cndmask_b32 v207, v205, v207, vcc
    buffer_load_dword v205, v206, s[8:11], s21 offen
    buffer_load_dword v205, v207, s[16:19], s22 offen
    """)

def epilogue1(a, name):
    T = VT
    for t in (1, 2):
        for x in h_valu(t): a(x)
    srd(a, 16, 82, WS_USED)
    a(f"""
    s_sub_u32 s49, s57, {2048 - 256}
    s_cmp_eq_u32 s28, 0
    s_cselect_b32 s18, 0, s18
    s_cselect_b32 s91, {hex(NEG)}, 0
    s_cselect_b32 s49, s57, s49
    s_cselect_b32 s50, 0, 1
    """)
    spe(a, 0)
    a(f"""
    s_waitcnt vmcnt(0)
    buffer_store_dword v{VONE}, v{VFL}, s[12:15], s57 offen offset:256 sc1
    """)
    stamp(a, 7)
    for t in range(HA):
        for x in h_addr(t) + [h_store(t, 0), h_store(t, 1)]: a(x)
        for x in h_valu(3 + t): a(x)
    for t in range(3 + HA, 5):
        for x in h_valu(t): a(x)
    a(f"buffer_load_dword v{VPOLL}, v{VZERO}, s[12:15], s49 offen sc1")
    for t in (5, 6):
        for x in h_valu(t): a(x)
    for t in range(HB, 7):
        for p in range(2):
            for k in range(4): a(f"v_accvgpr_write_b32 a{8*t+4*p+k}, v{acc1(6+t, 2*p)+k}")
    a(f"""
    s_lshl_b32 s40, s20, 12
    s_add_u32 m0, s40, {KB}
    s_add_u32 s41, s63, s40
    s_sub_u32 s41, s41, {32*32768}
    """)
    spe(a, 1)
    a(f"""
    s_waitcnt vmcnt(0)
    v_cmp_ne_u32 vcc, s50, v{VPOLL}
    s_nop 4
    s_cbranch_vccnz {name}_spin_kv
    """)
    a.label(f"{name}_spin_kv_ret")
    stamp(a, 8)
    for p in range(4):
        a(f"buffer_load_dwordx4 v{VL16}, s[16:19], s41 offen offset:{1024*p} sc1 lds")
    a(f"s_add_u32 m0, s40, {VB}")
    a("s_add_u32 s41, s41, 16384")
    for p in range(4):
        a(f"buffer_load_dwordx4 v{VL16}, s[16:19], s41 offen offset:{1024*p} sc1 lds")
    for t in range(HA, HB):
        for x in h_addr(t) + [h_store(t, 0), h_store(t, 1)]: a(x)
    attn_setup(a)
    for (_, x) in p2_setup_fill(): a(x)
    a(f"s_waitcnt vmcnt({2*(HB-HA)}) lgkmcnt(0)")
    a("s_barrier")
    stamp(a, 9)

def attn_setup(a):
    T = VT
    for m in range(4):
        q0 = acc1(4, m); q1 = acc1(5, m); d = QR + 4 * m
        a(f"""
        v_cvt_pk_bf16_f32 v{d}, v{q0}, v{q0+1}
        v_cvt_pk_bf16_f32 v{d+1}, v{q0+2}, v{q0+3}
        v_cvt_pk_bf16_f32 v{d+2}, v{q1}, v{q1+1}
        v_cvt_pk_bf16_f32 v{d+3}, v{q1+2}, v{q1+3}
        """)
    a(f"""
    v_and_b32 v{T+2}, 15, v{VL}
    v_lshrrev_b32 v{T+3}, 4, v{VL}
    v_lshlrev_b32 v{T+3}, 2, v{T+3}
    v_sub_u32 v{T+2}, v{T+2}, v{T+3}     ; q - 4g
    v_mov_b32 v{T+3}, {hex(NEG)}
    v_mov_b32 v{T+4}, s91
    """)
    for r in range(4):
        a(f"""
        v_cmp_gt_i32 vcc, {r}, v{T+2}
        v_cndmask_b32 v{MU+r}, v{T+3}, v{T+4}, vcc
        v_cndmask_b32 v{MD+r}, 0, v{T+3}, vcc
        v_mov_b32 v{ONES+r}, 0x3f803f80
        """)
    a(f"""
    s_lshl_b32 s40, s20, 12
    s_add_u32 s40, s40, {KB}
    v_add_u32 v{VKR}, s40, v{VL16}
    s_mov_b32 s90, {hex(f2u(CSC))}
    s_lshl_b32 s92, s20, 2
    s_sub_u32 s92, 16, s92
    s_cmp_eq_u32 s28, 0
    s_cselect_b32 s92, s92, 99
    """)

def attn_unit(a, name, u, ool, mid=None, side=None, head=None, pre_store=()):
    QA = vr(QR + 8 * u, 4); QB = vr(QR + 8 * u + 4, 4)
    SA = lambda k: 8 * k
    SB = lambda k: 8 * k + 4
    kreg = lambda k: KST + 4 * k
    rdk = lambda k: f"ds_read_b128 {ar(kreg(k),4)}, v{VKR} offset:{(2*u + k)*1024}"
    rdv = lambda k: f"ds_read_b128 {ar(kreg(k),4)}, v{VKR} offset:{32768 + (2*u + k)*1024}"
    for r in range(4): a(f"v_mov_b32 v{VZ+r}, s91")
    for k in range(6): a(rdk(k))
    pend = []
    first = {0: True, 1: True}
    def maxops(which, s):
        m = VMA + which
        if first[which]:
            first[which] = False
            return [f"v_max3_f32 v{m}, v{s}, v{s+1}, v{s+2}", f"v_max_f32 v{m}, v{m}, v{s+3}"]
        return [f"v_max3_f32 v{m}, v{m}, v{s}, v{s+1}", f"v_max3_f32 v{m}, v{m}, v{s+2}, v{s+3}"]
    lg = 6
    for k in range(18):
        if k + 6 < 18:
            a(rdk(k + 6)); lg += 1
        elif k >= 14:
            a(rdv(k - 14)); lg += 1
        lg -= 1
        a(f"s_waitcnt lgkmcnt({lg})")
        if 2 <= k <= 14 and k % 2 == 0:
            a(f"s_cmp_eq_u32 s92, {k}")
            a(f"s_cbranch_scc1 {name}_zf_{u}_{k}")
            a.label(f"{name}_zfr_{u}_{k}")
            ool.append((f"{name}_zf_{u}_{k}", f"{name}_zfr_{u}_{k}"))
        K = ar(kreg(k), 4)
        if k <= 16:
            C = vr(MU, 4) if k == 0 else (vr(MD, 4) if k == 16 else vr(VZ, 4))
            a(f"{MFMA} {vr(SA(k),4)}, {K}, {QA}, {C}")
            for x in pend[:2]: a(x)
            pend = pend[2:]
        if k >= 1:
            C = vr(MU, 4) if k == 1 else (vr(MD, 4) if k == 17 else ("0" if k == 16 else vr(VZ, 4)))
            a(f"{MFMA} {vr(SB(k),4)}, {K}, {QB}, {C}")
            for x in pend[:2]: a(x)
            pend = pend[2:]
        if k >= 2:
            kk = k - 2
            if kk <= 16: pend += maxops(0, SA(kk))
            if kk >= 1: pend += maxops(1, SB(kk))
    for kk in (16, 17):
        if kk <= 16: pend += maxops(0, SA(kk))
        pend += maxops(1, SB(kk))
    a(rdv(4)); a(rdv(5)); lg += 2
    for x in pend: a(x)
    a(f"""
    v_mov_b32 v{VTM}, v{VMA}
    v_mov_b32 v{VTM+1}, v{VMB}
    v_permlane32_swap_b32 v{VMA}, v{VTM}
    v_permlane32_swap_b32 v{VMB}, v{VTM+1}
    v_max_f32 v{VMA}, v{VMA}, v{VTM}
    v_max_f32 v{VMB}, v{VMB}, v{VTM+1}
    v_mov_b32 v{VTM}, v{VMA}
    v_mov_b32 v{VTM+1}, v{VMB}
    v_permlane16_swap_b32 v{VMA}, v{VTM}
    v_permlane16_swap_b32 v{VMB}, v{VTM+1}
    v_max_f32 v{VMA}, v{VMA}, v{VTM}
    v_max_f32 v{VMB}, v{VMB}, v{VTM+1}
    v_mul_f32 v{VMA}, s90, v{VMA}
    v_mul_f32 v{VMB}, s90, v{VMB}
    s_sub_u32 s92, s92, 2
    """)
    if mid: mid()
    def pvm(p):
        out = []
        PA = vr(16 * p, 4); PB = vr(16 * p + 4, 4)
        for (P, o) in ((PA, OA), (PB, OA + 12)):
            for dt in range(2):
                D = vr(o + 4 * dt, 4)
                out.append(f"{MFMA} {D}, {ar(kreg(2*p+dt),4)}, {P}, {'0' if p == 0 else D}")
            D = vr(o + 8, 4)
            out.append(f"{MFMA} {D}, {vr(ONES,4)}, {P}, {'0' if p == 0 else D}")
        return out
    vnext = 6
    for p in range(10):
        va = []
        if p < 9:
            b = 16 * p
            live = [r for r in range(16) if not (p == 0 and 4 <= r < 8) and not (p == 8 and 8 <= r < 12)]
            for r in live:
                m = VMA if (r & 4) == 0 else VMB
                va.append(f"v_fma_f32 v{b+r}, v{b+r}, s90, -v{m}")
            for r in live:
                va.append(f"v_exp_f32 v{b+r}, v{b+r}")
            for (d, s) in ((0, 0), (1, 2), (2, 8), (3, 10), (4, 4), (5, 6), (6, 12), (7, 14)):
                if s in live: va.append(f"v_cvt_pk_bf16_f32 v{b+d}, v{b+s}, v{b+s+1}")
                else: va.append(f"v_mov_b32 v{b+d}, 0")
        if head and p in head: head[p]()
        if side and p in side:
            sd = side[p]; st_ = max(1, len(va) // (len(sd) + 1)); nv = []
            for k, x in enumerate(va):
                nv.append(x)
                if (k + 1) % st_ == 0 and sd: nv.append(sd.pop(0))
            va = nv + sd
        mm = []
        if p >= 1:
            lg -= 2
            a(f"s_waitcnt lgkmcnt({lg})")
            mm = pvm(p - 1)
        if vnext < 18:
            a(rdv(vnext)); a(rdv(vnext + 1)); vnext += 2; lg += 2
        n = len(va)
        step = max(1, n // 6) if mm else n
        i = 0
        for k, x in enumerate(va):
            if mm and k % step == 2 % step and i < len(mm):
                a(mm[i]); i += 1
            a(x)
        while i < len(mm):
            a(mm[i]); i += 1
    T = VT
    a(f"""
    v_rcp_f32 v{VTM}, v{OA+8}
    v_rcp_f32 v{VTM+1}, v{OA+20}
    v_mul_f32 v{VTM}, v{VTM}, v{VG+2*u}
    v_mul_f32 v{VTM+1}, v{VTM+1}, v{VG+2*u+1}
    """)
    for r in range(8):
        a(f"v_mul_f32 v{OA+r}, v{OA+r}, v{VTM}")
        a(f"v_mul_f32 v{OA+12+r}, v{OA+12+r}, v{VTM+1}")
    for x in pre_store: a(x)
    for dt in range(2):
        d = T + 4 + 4 * dt
        a(f"""
        v_cvt_pk_bf16_f32 v{d}, v{OA+4*dt}, v{OA+4*dt+1}
        v_cvt_pk_bf16_f32 v{d+1}, v{OA+4*dt+2}, v{OA+4*dt+3}
        v_cvt_pk_bf16_f32 v{d+2}, v{OA+12+4*dt}, v{OA+12+4*dt+1}
        v_cvt_pk_bf16_f32 v{d+3}, v{OA+12+4*dt+2}, v{OA+12+4*dt+3}
        v_permlane32_swap_b32 v{d}, v{d+2}
        v_permlane32_swap_b32 v{d+1}, v{d+3}
        buffer_store_dwordx4 {vr(d,4)}, v{VH}, s[12:15], s56 offen offset:{512*dt} sc1
        """)
    a(f"s_add_u32 s56, s56, {2*MT_STRIDE}")

def attention(a, name, ool):
    a(f"""
    s_lshr_b32 s40, s29, 3
    s_mul_i32 s40, s40, 36
    s_and_b32 s41, s29, 7
    s_add_u32 s40, s40, s41
    s_add_u32 s40, s40, 28
    s_lshl_b32 s40, s40, 10
    s_add_u32 s56, s40, s44
    """)
    def chunks(L, ps):
        n = len(ps); per = (len(L) + n - 1) // n
        return {p: L[i*per:(i+1)*per] for i, p in enumerate(ps)}
    assert not SP.L, len(SP.L)
    wd = [x for s_ in range(R2) for g in w2_dma(s_) for x in g]
    if W2V == 0: wd = w2vec() + wd
    if W2V == 1: wd = wd + w2vec()
    hf = lines(f"""
    s_waitcnt vmcnt({nmem(wd)})
    buffer_store_dword v{VONE}, v{VFL}, s[12:15], s57 offen sc1
    """)
    sd = chunks(h_late(), range(0, 3)); sd.update(chunks(wd, range(3, 9)))
    attn_unit(a, name, 0, ool, side=sd, pre_store=hf)
    stamp(a, 10)
    if W2V == 2:
        for x in w2vec(): a(x)
    if O.stop != 'p1':
        al = []
        for s_ in range(R2):
            al += [a2_ld(s_, m) for m in range(4)] + ["s_add_u32 s84, s84, 1024"]
        attn_unit(a, name, 1, ool, mid=lambda: p2_poll_h(a), head={5: lambda: p2_check_h(a, name)}, side=chunks(al, range(5, 9)))
    else:
        attn_unit(a, name, 1, ool)
    stamp(a, 11)

VA2 = 209; VW2 = 213; VR2 = 217
R2 = 6
AR2 = 0; WF2 = 96
def acc2(n, m): return (n * 4 + m) * 4

def p2_setup_fill():
    T = VT
    txt = f"""
    s_and_b32 s40, s2, 7
    s_lshr_b32 s41, s2, 3
    s_and_b32 s62, s40, 1            ; kh
    s_lshr_b32 s60, s40, 1
    s_lshl_b32 s60, s60, 2
    s_and_b32 s42, s41, 3
    s_add_u32 s60, s60, s42          ; mt
    s_lshr_b32 s61, s41, 2           ; nt
    s_and_b32 s88, s20, 1            ; wm
    s_lshr_b32 s89, s20, 1           ; wk
    s_lshl_b32 s42, s62, 1
    s_add_u32 s42, s42, s89          ; quarter
    s_lshl_b32 s84, s60, 3
    s_lshl_b32 s43, s88, 2
    s_add_u32 s84, s84, s43
    s_mul_i32 s84, s84, 144
    s_mul_i32 s43, s42, 36
    s_add_u32 s84, s84, s43
    s_lshl_b32 s84, s84, 10          ; A soffset
    s_mul_i32 s85, s42, {28*32*2048} ; W2 soffset
    s_mul_i32 s86, s42, {8*32*2048}
    s_mul_i32 s87, s89, {R2*8192}
    s_lshl_b32 s43, s88, 12
    s_add_u32 s94, s87, s43          ; M0 base
    v_mov_b32 v{VA2}, v{VL16}
    v_add_u32 v{VA2+1}, {MT_STRIDE}, v{VL16}
    v_add_u32 v{VA2+2}, {2*MT_STRIDE}, v{VL16}
    v_add_u32 v{VA2+3}, {3*MT_STRIDE}, v{VL16}
    v_lshrrev_b32 v{T}, 4, v{VL}
    v_and_b32 v{T+1}, 15, v{VL}
    v_lshlrev_b32 v{T+2}, 1, v{T}
    v_xor_b32 v{T+1}, v{T+1}, v{T+2}
    v_lshlrev_b32 v{T}, 11, v{T}
    v_lshl_add_u32 v{T}, v{T+1}, 4, v{T}
    s_lshl_b32 s43, s88, 15
    s_lshl_b32 s42, s61, 8
    s_add_u32 s43, s43, s42
    v_add_u32 v{VW2}, s43, v{T}
    v_xor_b32 v{T}, 128, v{VW2}
    v_add_u32 v{VW2+1}, {4*2048-1024}, v{T}
    v_add_u32 v{VW2+2}, {8*2048-2048}, v{VW2}
    v_add_u32 v{VW2+3}, {12*2048-3072}, v{T}
    v_bfe_u32 v{T}, v{VL}, 2, 2
    v_bfe_u32 v{T+1}, v{VL}, 4, 1
    v_lshl_add_u32 v{T}, v{T+1}, 2, v{T}     ; row&7
    v_mul_u32_u24 v{T}, 288, v{T}
    v_lshrrev_b32 v{T+1}, 5, v{VL}
    v_lshl_add_u32 v{T}, v{T+1}, 12, v{T}
    v_and_b32 v{T+1}, 3, v{VL}
    v_lshl_add_u32 v{T}, v{T+1}, 3, v{T}
    v_add_u32 v{VR2}, s87, v{T}
    """
    L = [l.strip() for l in txt.strip().split("\n")]
    for n in range(1, 8):
        L.append(f"v_xor_b32 v{VR2+n}, {32*n}, v{VR2}")
    L += [f"s_mov_b32 s8, s74", "s_and_b32 s9, s75, 0xffff", f"s_mov_b32 s10, {3584*2048}",
          "s_mov_b32 s4, s82", "s_and_b32 s5, s83, 0xffff", f"s_mov_b32 s6, {KV_OFF}", "s_and_b32 s69, s69, 0xffff"]
    return [(2 + i // 2, l) for i, l in enumerate(L)]

def w2_dma(slot):
    g = [[f"s_add_u32 m0, s94, {slot*8192}", f"buffer_load_dwordx4 v{VW2}, s[8:11], s85 offen lds"]]
    for p in range(1, 4):
        g.append([f"buffer_load_dwordx4 v{VW2+p}, s[8:11], s85 offen offset:{1024*p} lds"])
    g[-1].append(f"s_add_u32 s85, s85, {32*2048}")
    return g

def a2_ld(slot, m):
    return f"buffer_load_dwordx4 {ar(AR2+16*slot+4*m,4)}, v{VA2+m}, s[4:7], s84 offen sc1"

def p2_poll_h(a):
    a(f"""
    v_and_b32 v{VPA}, 7, v{VL}
    v_lshlrev_b32 v{VPA}, 2, v{VPA}
    s_lshl_b32 s95, s60, 1
    s_add_u32 s95, s95, s88
    s_lshl_b32 s95, s95, 9
    s_lshl_b32 s40, s62, 1
    s_add_u32 s40, s40, s89
    s_lshl_b32 s40, s40, 5
    s_add_u32 s95, s95, s40
    s_add_u32 s95, s95, {FL_OFF}
    buffer_load_dword v{VPOLL}, v{VPA}, s[12:15], s95 offen sc1
    """)

def p2_check_h(a, name):
    a(f"""
    s_waitcnt vmcnt(0)
    v_cmp_ne_u32 vcc, 1, v{VPOLL}
    s_nop 4
    s_cbranch_vccnz {name}_spin_h
    """)
    a.label(f"{name}_spin_h_ret")

def reads2(st, slot):
    return [f"ds_read_b64_tr_b16 {ar(WF2+32*st+4*n+2*t,2)}, v{VR2+n} offset:{slot*8192 + t*2048}" for n in range(8) for t in range(2)]

def phase2(a, name):
    T = VT
    a("s_waitcnt vmcnt(26)")
    a("s_barrier")
    for r in reads2(0, 0): a(r)
    for r in range(128): a(f"v_mov_b32 v{r}, 0")
    a(f"s_mov_b32 s30, 0")
    a(f"s_add_u32 s95, s95, 128")
    a("s_waitcnt vmcnt(14) lgkmcnt(0)")
    a("s_barrier")
    stamp(a, 12)
    a.raw(".p2align 6")
    a.label(f"{name}_loop2")
    for pos in range(R2):
        st = pos & 1
        if pos in (4, 5):
            a(f"s_cmp_lt_u32 s30, 4")
            a(f"s_cbranch_scc1 {name}_ev2_{pos}")
            a.label(f"{name}_ev2r_{pos}")
        mf = []
        for m in range(4):
            for n in range(8):
                D = vr(acc2(n, m), 4)
                mf.append(f"{MFMA} {D}, {ar(WF2+32*st+4*n,4)}, {ar(AR2+16*pos+4*m,4)}, {D}")
        fill = [[] for _ in mf]
        for i, r in enumerate(reads2(st ^ 1, (pos + 1) % R2)): fill[i].append(r)
        g = w2_dma(pos)
        fill[1].append(g[0][0]); fill[2].append(g[0][1])
        fill[10] += g[1]; fill[18] += g[2]; fill[25] += g[3]
        for m in range(3): fill[8 * m + 7 + (0 if m else 0)].append(a2_ld(pos, m))
        fill[31].append(a2_ld(pos, 3))
        fill[28].append("s_waitcnt vmcnt(32) lgkmcnt(0)")
        fill[28].append("s_barrier")
        if pos == R2 - 1:
            fill[29] += ["s_add_u32 s30, s30, 1", "s_cmp_lt_u32 s30, 5"]
            fill[30] += ["s_cselect_b32 s10, s10, 0"]
            fill[31] += ["s_cselect_b32 s6, s6, 0", "s_add_u32 s84, s84, 1024", "s_cmp_lt_u32 s30, 6"]
        else:
            fill[31].append("s_add_u32 s84, s84, 1024")
        emit_gaps(a, mf, fill)
    a(f"s_cbranch_scc1 {name}_loop2")
    stamp(a, 13)
    final2(a, name)

def events2(a, name):
    T = VT
    a.label(f"{name}_ev2_4")
    a(f"""
    s_cmp_eq_u32 s30, 3
    s_cbranch_scc0 {name}_ev2r_4
    v_cmp_ne_u32 vcc, 1, v{VPOLL}
    s_mov_b32 s8, s68
    s_mov_b32 s9, s69
    s_mov_b32 s10, {1024*2048}
    s_mov_b32 s85, s86
    s_nop 1
    s_cbranch_vccnz {name}_spin_o
    s_branch {name}_ev2r_4
    """)
    a.label(f"{name}_ev2_5")
    a(f"""
    s_cmp_eq_u32 s30, 2
    s_cbranch_scc1 {name}_ev2_5b
    s_cmp_eq_u32 s30, 0
    s_cbranch_scc0 {name}_ev2r_5
    buffer_store_dword v{VONE}, v{VFL}, s[12:15], s57 offen offset:128 sc1
    s_branch {name}_ev2r_5
    """)
    a.label(f"{name}_ev2_5b")
    a(f"""
    buffer_load_dword v{VPOLL}, v{VPA}, s[12:15], s95 offen sc1
    s_branch {name}_ev2r_5
    """)
    spin(a, name, "h", 12, "s95", VPA, 1, f"{name}_spin_h_ret")
    spin(a, name, "o", 12, "s95", VPA, 1, f"{name}_ev2r_4")
    spin(a, name, "p", 12, "s46", VZERO, 1, f"{name}_spin_p_ret")

def final2(a, name):
    T = VT
    RED = KB
    a(f"""
    s_xor_b32 s40, s20, 2
    s_lshl_b32 s40, s40, 14
    s_add_u32 s40, s40, {RED}
    v_add_u32 v{T}, s40, v{VL16}
    s_lshl_b32 s40, s20, 14
    s_add_u32 s40, s40, {RED}
    v_add_u32 v{T+2}, s40, v{VL16}
    s_cmp_eq_u32 s89, 0
    s_cbranch_scc1 {name}_red0
    """)
    for q in range(16): a(f"ds_write_b128 v{T}, {vr(4*q,4)} offset:{1024*q}")
    a("s_nop 1")
    for r in range(64): a(f"v_mov_b32 v{r}, v{64+r}")
    a(f"s_branch {name}_red1")
    a.label(f"{name}_red0")
    for q in range(16): a(f"ds_write_b128 v{T}, {vr(64+4*q,4)} offset:{1024*q}")
    a.label(f"{name}_red1")
    a("s_waitcnt lgkmcnt(0)")
    a("s_barrier")
    for q in range(16): a(f"ds_read_b128 {vr(64+4*q,4)}, v{T+2} offset:{1024*q}")
    a(f"""
    s_lshl_b32 s40, s2, 2
    s_add_u32 s40, s40, s20
    s_lshl_b32 s41, s40, 13
    s_add_u32 s41, s41, {PX_OFF}
    s_xor_b32 s42, s40, 4
    s_lshl_b32 s43, s42, 13
    s_add_u32 s43, s43, {PX_OFF}
    s_add_u32 s45, s57, 384
    s_xor_b32 s46, s45, 8192
    s_add_u32 s47, s41, 4096
    s_add_u32 s48, s43, 4096
    """)
    for q in range(16):
        if q % 4 == 0: a(f"s_waitcnt lgkmcnt({12 - q})")
        for r in range(4): a(f"v_add_f32 v{4*q+r}, v{4*q+r}, v{64+4*q+r}")
    stamp(a, 14)
    a(f"s_cmp_eq_u32 s62, 0")
    a(f"s_cbranch_scc1 {name}_x0")
    for n in range(4):
        for h in range(2):
            i = 2 * n + h
            a(f"buffer_store_dwordx4 {vr(16*n+4*h,4)}, v{VL16}, s[12:15], s{41 if i < 4 else 47} offen offset:{1024*(i%4)} sc1")
    a("s_nop 1")
    for n in range(4):
        for r in range(8): a(f"v_mov_b32 v{16*n+r}, v{16*n+8+r}")
    a(f"s_branch {name}_x1")
    a.label(f"{name}_x0")
    for n in range(4):
        for h in range(2):
            i = 2 * n + h
            a(f"buffer_store_dwordx4 {vr(16*n+8+4*h,4)}, v{VL16}, s[12:15], s{41 if i < 4 else 47} offen offset:{1024*(i%4)} sc1")
    a.label(f"{name}_x1")
    a(f"""
    s_waitcnt vmcnt(0)
    buffer_store_dword v{VONE}, v{VFL}, s[12:15], s45 offen sc1
    """)
    stamp(a, 15)
    srd(a, 16, 78, 2048*1024*2)
    a(f"""
    v_and_b32 v{T+2}, 15, v{VL}
    v_lshlrev_b32 v{T+2}, 11, v{T+2}
    v_bfe_u32 v{T+3}, v{VL}, 4, 1
    v_lshl_add_u32 v{T+2}, v{T+3}, 5, v{T+2}
    v_lshrrev_b32 v{T+3}, 5, v{VL}
    v_lshl_add_u32 v{T+2}, v{T+3}, 4, v{T+2}
    s_lshl_b32 s40, s60, 2
    s_lshl_b32 s41, s88, 1
    s_add_u32 s40, s40, s41
    s_add_u32 s40, s40, s62
    s_lshl_b32 s40, s40, 16
    s_lshl_b32 s41, s61, 8
    s_add_u32 s40, s40, s41
    s_lshl_b32 s41, s89, 7
    s_add_u32 s40, s40, s41
    s_add_u32 s41, s40, {16*2048}
    s_branch {name}_spin_p
    """)
    a.label(f"{name}_spin_p_ret")
    stamp(a, 16)
    for n in range(4):
        for h in range(2):
            i = 2 * n + h
            a(f"buffer_load_dwordx4 {vr(64+4*i,4)}, v{VL16}, s[12:15], s{43 if i < 4 else 48} offen offset:{1024*(i%4)} sc1")
    for np_ in range(2):
        a(f"s_waitcnt vmcnt({4 if np_ == 0 else 2})")
        for h in range(2):
            d = 96 + 8 * np_ + 4 * h
            for k in range(2):
                n = 2 * np_ + k
                r = 16 * n + 4 * h; s = 64 + 4 * (2 * n + h)
                for q in range(4): a(f"v_add_f32 v{r+q}, v{r+q}, v{s+q}")
                a(f"v_cvt_pk_bf16_f32 v{d+2*k}, v{r}, v{r+1}")
                a(f"v_cvt_pk_bf16_f32 v{d+2*k+1}, v{r+2}, v{r+3}")
            a(f"v_permlane16_swap_b32 v{d}, v{d+2}")
            a(f"v_permlane16_swap_b32 v{d+1}, v{d+3}")
            a(f"buffer_store_dwordx4 {vr(d,4)}, v{T+2}, s[16:19], s{40+h} offen offset:{64*np_}")
    if O.diag:
        a("s_waitcnt vmcnt(0)")
    stamp(a, 17)

def build():
    name = "fused_kernel"
    HDR = open("gated_mix__sliding_block__dense_activation_relu__prompt.s.ref").read().split("; Override launch")[0]
    a = Asm()
    kernel_begin(a, name)
    ool = []
    phase1(a, name)
    epilogue1(a, name)
    attention(a, name, ool)
    if O.stop != 'p1':
        phase2(a, name)
    dump(a)
    a.label(f"{name}_end")
    a("s_endpgm")
    events1(a, name)
    spin(a, name, "kv", 12, "s49", VZERO, "s50", f"{name}_spin_kv_ret")
    if O.stop != 'p1':
        events2(a, name)
    for (l, r) in ool:
        a.label(l)
        a("s_nop 3")
        for q in range(4): a(f"v_mov_b32 v{VZ+q}, 0")
        a("s_nop 1")
        a(f"s_branch {r}")
    body = hazard.fix(a.lines, verbose=True)
    h = Asm()
    h.raw(HDR.rstrip("\n"))
    h.raw(f"; @launch kernel={name} grid=(256,1,1) block=(256,1,1) lds=163840")
    h.raw('.amdgcn_target "amdgcn-amd-amdhsa--gfx950"')
    h.lines += body
    kernel_desc(h, name, 512, 256)
    return h.text()

if __name__ == "__main__":
    for x in sys.argv[2:]:
        if x == "diag": O.diag = True
        if x == "p1": O.stop = 'p1'
        if x == "nopf": O.pf2 = False
        if x == "nopf1": O.pf1 = False
        if "=" in x: exec(x, globals())
    open(sys.argv[1], "w").write(build())
```

```python
import sys, struct
from asmlib import *
import hazard

A2_OFF = 0
KV_OFF = 0x1200000
PX_OFF = 0x1A00000
G_OFF  = 0x2200000
FL_OFF = 0x2204000
WS_USED = 0x2208000
DIAG_OFF = 0x2400000
MT_STRIDE = 144 * 1024

SLOT = 30720; NSLOT = 5
KB = 98304; VB = KB + 32768
NEG = 0xf149f2ca
CSC = 0.17677669529663687 * 1.4426950408889634
def f2u(x): return struct.unpack("<I", struct.pack("<f", x))[0]

class Opt:
    diag = False
    stop = None
    pf2 = True
    pf1 = True
O = Opt()

VL = 208; VD = 209; VXB = 219; VHB = 220; VQ0B = 221; VQ1B = 222
VXR = 223; VHR = 224; VQ0R = 225; VQ1R = 226
VG = 227; VOG = 231; VL16 = 235; VT = 236
VFL = 249; VONE = 250; VZERO = 251; VH = 252; VPA = 253; VPOLL = 254; VST = 255
QOFF = 16384; HOFF = 22528; GL = 153600
PFL = 12
PF0 = 3
MFMA = "v_mfma_f32_16x16x32_bf16"

nst = [0]
SS = 0; MINI = 0
def stamp(a, n):
    if not O.diag: return
    if SS and n >= 18: return
    if MINI and n not in (0, 9, 10, 11, 12, 13, 14, 17): return
    a(f"""
    s_memtime s[96:97]
    s_memrealtime s[98:99]
    s_waitcnt lgkmcnt(0)
    v_writelane_b32 v{VST}, s96, {2*n}
    v_writelane_b32 v{VST}, s98, {2*n+1}
    """)

def dump(a):
    if not O.diag: return
    a(f"""
    s_mov_b32 s14, 0x4000000
    s_lshl_b32 s40, s2, 2
    s_add_u32 s40, s40, s20
    s_lshl_b32 s40, s40, 8
    s_add_u32 s40, s40, {DIAG_OFF}
    v_lshlrev_b32 v{VT}, 2, v{VL}
    buffer_store_dword v{VST}, v{VT}, s[12:15], s40 offen
    """)

def srd(a, d, lo, nrec):
    a(f"""
    s_mov_b32 s{d}, s{lo}
    s_and_b32 s{d+1}, s{lo+1}, 0xffff
    s_mov_b32 s{d+2}, {nrec}
    s_mov_b32 s{d+3}, 0x20000
    """)

def emit_gaps(a, mf, fill):
    for m, ins in enumerate(mf):
        a(ins)
        for f in fill[m]:
            a(f)

def spin(a, name, tag, srdn, soff, vaddr, want, ret, cmp="v_cmp_ne_u32"):
    a.label(f"{name}_spin_{tag}")
    a("s_mov_b32 s93, 0")
    a.label(f"{name}_spinl_{tag}")
    a(f"""
    buffer_load_dword v{VPOLL}, v{vaddr}, s[{srdn}:{srdn+3}], {soff} offen sc1
    s_add_u32 s93, s93, 1
    s_waitcnt vmcnt(0)
    {cmp} vcc, {want}, v{VPOLL}
    s_cmp_gt_u32 s93, 0x40000
    s_cbranch_scc1 {ret}
    s_nop 1
    s_cbranch_vccnz {name}_spinl_{tag}
    s_branch {ret}
    """)

def lines(txt): return [l.strip() for l in txt.strip().split("\n") if l.strip()]
def xf(st, i): return st * 68 + 4 * i
def wf(st, t): return st * 68 + 16 + 4 * t
def acc1(t, m): return (t * 4 + m) * 4
SEC = {0: 1, 1: 1, 2: 2, 3: 2, 4: 0, 5: 0}
XSL = 32768; WB = 98304; WSL = 13312; HO = 6144; SCR = WB + 4 * WSL
VPF = 217; VXR1 = 218; VE = 252
XB = lambda D: (D % 3) * XSL

def reads1(n):
    st = n & 1; o = WSL * (n % 4); xb = XB(n >> 1)
    xr = [[VXB, VXR1], [VXR, VHR]][xb >> 16][n & 1]
    r = [f"ds_read_b128 {ar(xf(st,i),4)}, v{xr} offset:{(xb & 65535) + 2048*i} ; rd=X{n >> 1}" for i in range(4)]
    for t in range(13):
        for h in range(2):
            if t < 6:
                r.append(f"ds_read_b64_tr_b16 {ar(wf(st,t)+2*h,2)}, v{VQ0B + (t&1)} offset:{o + SEC[t]*1024 + h*512} ; rd=W{n}")
            else:
                r.append(f"ds_read_b64_tr_b16 {ar(wf(st,t)+2*h,2)}, v{VHB} offset:{o + h*1792 + (t-6)*32} ; rd=W{n}")
    return r

def mfmas1(st, czero=False):
    out = []
    for t in range(13):
        for m in range(4):
            D = vr(acc1(t, m), 4); W = ar(wf(st, t), 4); X = ar(xf(st, m), 4)
            C = "0" if czero else D
            if t in (2, 3): out.append(f"{MFMA} {D}, {X}, {W}, {C}")
            else: out.append(f"{MFMA} {D}, {W}, {X}, {C}")
    return out

def dmaX(h, D):
    g = [f"s_add_u32 m0, s55, {XB(D) + 4096*h}"]
    for p in range(4):
        g.append(f"buffer_load_dwordx4 v{VD+p}, s[4:7], s{31 if h else 23} offen offset:{1024*p} lds ; tag=X{D}")
    g.append(f"s_add_u32 s{31 if h else 23}, s{31 if h else 23}, 128")
    return g
def dmaW(n):
    g = [f"s_add_u32 m0, s32, {(n % 4) * WSL}"]
    for p in range(3):
        g.append(f"buffer_load_dwordx4 v{VD+4+p}, s[8:11], s24 offen offset:{1024*p} lds ; tag=W{n}")
    g += [f"s_mov_b32 m0, s{50 + n % 4}", f"buffer_load_dwordx4 v{VD+7}, s[8:11], s24 offen lds ; tag=W{n}", "s_add_u32 s24, s24, s27"]
    return g

class CK:
    land = {}; rd = {}
OPS = []
def emit(a, x):
    if x.startswith("%SYNC"):
        _, needs, lgk, bar = x.split()
        needs = needs.split(",")
        n = 63
        for t in needs:
            if t.startswith("old"): n = min(n, int(t[3:])); continue
            idx = [i for i, o in enumerate(OPS) if o == t]
            if idx: n = min(n, len(OPS) - 1 - max(idx))
        w = (f"vmcnt({n}) " if n < 63 else "") + (f"lgkmcnt({lgk})" if lgk != "-" else "")
        if w: a(f"s_waitcnt {w}")
        if bar == "1": a("s_barrier")
        for i, o in enumerate(OPS):
            if i < len(OPS) - n and CK.land.get(o, 0) < 1 and o not in OPS[max(0, len(OPS) - n):]: CK.land[o] = 1
        if lgk != "-":
            for t in CK.rd: CK.rd[t][1] = max(CK.rd[t][1], 1) if CK.rd[t][1] < 1 else CK.rd[t][1]
        if bar == "1":
            for t in CK.land: CK.land[t] = 2
            for t in CK.rd:
                if CK.rd[t][1] == 1: CK.rd[t][1] = 2
        return
    if x.startswith("buffer_"):
        t = x.split("tag=")[1] if "tag=" in x else "-"
        OPS.append(t)
        if t[0] in "WX" and int(t[1:]) >= (4 if t[0] == "W" else 3):
            old = t[0] + str(int(t[1:]) - (4 if t[0] == "W" else 3))
            assert CK.rd[old][0] == (26 if t[0] == "W" else 8) and CK.rd[old][1] >= (2 if t[0] == "W" else 1), ("overwrite", t, CK.rd[old])
    if "rd=" in x:
        t = x.split("rd=")[1]
        assert OPS.count(t) == (4 if t[0] == "W" else 8) and CK.land.get(t, 0) >= (2 if t[0] == "W" else 1), ("early read", t)
        c = CK.rd.setdefault(t, [0, 0]); c[0] += 1; c[1] = 0
    a(x)
def sync(needs, lgk, bar): return f"%SYNC {','.join(needs) if needs else '-'} {lgk} {bar}"

def cost(ins):
    if ins.endswith(":"): return 0
    if ins.startswith("%SYNC"): return 2
    if ins.startswith(("v_mfma", "v_exp", "v_rcp")): return 2
    if ins.startswith("buffer_"): return DMAC
    return 1
DMAC = 2

def spread(fill, seq, lo, hi):
    n = sum(1 for x in seq if x.startswith("buffer_"))
    k = 0; last = lo - 1
    pre = []
    for x in seq:
        if x.startswith("buffer_"):
            pos = max(lo + (k * (hi - lo)) // n, last); k += 1
            for y in pre: fill[max(pos - 1, last)].append(y)
            pre = []
            fill[pos].append(x); last = pos
        elif "m0" in x.split(",")[0] or x.endswith("; m0"):
            pre.append(x)
        else:
            last = last + 1
            fill[last].append(x)
    assert not pre

def stream(fill, q, lo=0, hi=None, cap=2):
    for gi in range(lo, hi if hi is not None else len(fill)):
        c = sum(cost(x) for x in fill[gi])
        while q:
            if q[0].startswith("@"):
                if gi < int(q[0][1:]): break
                q.pop(0); continue
            if c + cost(q[0]) > cap: break
            x = q.pop(0); c += cost(x); fill[gi].append(x)

BAR = 47
MLO = 4; MHI = 44
RDPOS = lambda k: k + k // 4
def step1(a, n, rdpos=None, mem=(), extra=(), q=None, qlo=0, mlo=None, mhi=None, first=()):
    extra = list(extra)
    if O.diag and SS and n < 28: extra.append((BAR - 1, "s_memtime s[96:97]"))
    if O.diag and SS and 1 <= n < 29: extra.append((20, f"v_writelane_b32 v{VST}, s96, {35 + n}"))
    mf = mfmas1(n & 1, n == 0)
    fill = [[] for _ in mf]
    for pos, ins in first: fill[pos].append(ins)
    if rdpos:
        for k, r in enumerate(reads1(n + 1)): fill[rdpos(k)].append(r)
    if mem: spread(fill, list(mem), MLO if mlo is None else mlo, mhi or MHI)
    for pos, ins in extra: fill[pos].append(ins)
    if q is not None: stream(fill, q, qlo, 52)
    for m, ins in enumerate(mf):
        a(ins)
        for f in fill[m]: emit(a, f)

def lds_bases(a):
    T = VT
    a(f"""
    v_and_b32 v{T}, 15, v{VL}
    v_lshlrev_b32 v{T+1}, 7, v{T}
    v_lshrrev_b32 v{T+2}, 4, v{VL}           ; G
    v_and_b32 v{T+3}, 7, v{VL}
    v_xor_b32 v{T+3}, v{T+3}, v{T+2}
    v_lshl_add_u32 v{T+1}, v{T+3}, 4, v{T+1}
    v_add_u32 v{VXB}, s55, v{T+1}
    v_bfe_u32 v{T+3}, v{VL}, 2, 2            ; i>>2
    v_bfe_u32 v{T+4}, v{VL}, 4, 1            ; G&1
    v_lshl_add_u32 v{T+3}, v{T+4}, 2, v{T+3} ; (G&1)*4 + (i>>2)
    v_lshrrev_b32 v{T+5}, 5, v{VL}           ; G>>1
    v_and_b32 v{T+6}, 3, v{VL}
    v_lshlrev_b32 v{T+6}, 3, v{T+6}          ; (i&3)*8
    v_lshl_add_u32 v{T+7}, v{T+5}, 4, v{T+3}
    v_mul_u32_u24 v{T+7}, 224, v{T+7}
    v_add_u32 v{VHB}, v{T+7}, v{T+6}
    v_add_u32 v{VHB}, {WB + HO}, v{VHB}
    v_mul_u32_u24 v{T+7}, 3072, v{T+5}
    v_lshl_add_u32 v{T+7}, v{T+3}, 6, v{T+7}
    v_lshl_add_u32 v{T+7}, v{T+4}, 5, v{T+7}
    v_add_u32 v{T+7}, v{T+7}, v{T+6}
    v_add_u32 v{VQ0B}, {WB}, v{T+7}
    v_xor_b32 v{VQ1B}, 32, v{VQ0B}
    v_add_u32 v{VXR}, 0x10000, v{VXB}
    v_xor_b32 v{VXR1}, 64, v{VXB}
    v_xor_b32 v{VHR}, 64, v{VXR}
    s_lshl_b32 s42, s28, 5
    s_add_u32 s42, s42, s29          ; rb*32+j
    s_lshl_b32 s63, s42, 15
    s_add_u32 s63, s63, {KV_OFF}
    s_lshl_b32 s57, s28, 2
    s_add_u32 s57, s57, s20
    s_lshl_b32 s57, s57, 7
    s_add_u32 s57, s57, s29
    s_lshl_b32 s57, s57, 2
    s_add_u32 s57, s57, {FL_OFF}
    s_lshl_b32 s48, s42, 3
    s_lshl_b32 s41, s20, 1
    s_add_u32 s48, s48, s41
    s_lshl_b32 s49, s48, 11
    """)
    srd(a, 12, 82, WS_USED)

OOB = 0x40000000
NPX = 2
NPC = 2
X2M = 1
XL2 = (2, 4)
X1N = 2
def pf_rows(a, stride, nl, sec):
    T = VT
    a(f"""
    v_and_b32 v{T}, 15, v{VL}
    v_lshrrev_b32 v{T+1}, 4, v{VL}
    v_mov_b32 v{T+5}, {OOB}
    """)
    if sec:
        a(f"""
        v_lshrrev_b32 v{T+2}, 2, v{T}
        v_and_b32 v{T+3}, 3, v{T}
        v_lshlrev_b32 v{T+2}, 11, v{T+2}
        v_lshl_add_u32 v{T+2}, v{T+3}, 7, v{T+2}
        s_lshl_b32 s42, s43, 9
        """)
    else:
        a(f"""
        v_lshlrev_b32 v{T+2}, 7, v{T}
        s_mul_i32 s42, s43, 1792
        """)
    a(f"""
    v_cmp_gt_u32 vcc, {nl}, v{T}
    v_add_u32 v{T+2}, s42, v{T+2}
    v_lshl_add_u32 v{T+3}, v{T+1}, 5, s41          ; row = i + 32 r
    s_add_u32 s42, s46, {(32 * NPX - 64 * NPX) & 0xffffffff}
    v_cndmask_b32 v{T+2}, v{T+5}, v{T+2}, vcc
    v_cmp_gt_u32 vcc, {NPX}, v{T+1}
    v_lshl_add_u32 v{T+4}, v{T+1}, 6, s42
    v_cndmask_b32 v{T+3}, v{T+4}, v{T+3}, vcc
    v_cmp_gt_u32 vcc, {NPX + NPC}, v{T+1}
    v_mul_u32_u24 v{T+3}, {stride}, v{T+3}
    v_add_u32 v{T+3}, v{T+3}, v{T+2}
    v_cndmask_b32 v{VPF}, v{T+5}, v{T+3}, vcc
    """)

def xpf(a, l0, n):
    T = VT
    a(f"""
    v_and_b32 v{T}, 31, v{VL}
    v_lshlrev_b32 v{T}, 11, v{T}
    v_lshrrev_b32 v{T+1}, 5, v{VL}
    v_lshl_add_u32 v{T}, v{T+1}, {7 if n == 2 else 30}, v{T}
    s_and_b32 s44, s2, 1
    s_lshl_b32 s44, s44, 21
    s_lshl_b32 s42, s41, 16
    s_add_u32 s44, s44, s42
    s_add_u32 s44, s44, {128 * l0}
    v_add_u32 v{VPF}, s44, v{T}
    """)

RND = 129024
class SP:
    L = []
def sp_build():
    R0 = 32 * NPX + 64 * NPC
    L = []
    for (reg, rows, stride) in ((60, 21, 6144), (94, 18, 7168)):
        r = R0; base = 0
        while r < 1024:
            r = min(r, 1024 - rows)
            off = r * stride
            pre = []
            if off - base >= 1 << 20:
                d = off - base
                pre = [f"s_add_u32 s{reg}, s{reg}, {d}", f"s_addc_u32 s{reg+1}, s{reg+1}, 0"]; base = off
            L.append((r, pre + [f"s_load_dwordx2 s[100:101], s[{reg}:{reg+1}], {off - base}"]))
            r += rows
    L.sort(key=lambda x: x[0])
    L = [x[1] for x in L] if O.pf1 else []
    SP.nw = len(L)
    if O.pf2:
        base = 0
        for n in range(W2S):
            for h in range(2):
                off = n * 65536 + 128 * h; pre = []
                if off - base >= 1 << 20:
                    pre = [f"s_add_u32 s88, s88, {off - base}", "s_addc_u32 s89, s89, 0"]; base = off
                L.append(pre + [f"s_load_dwordx2 s[100:101], s[88:89], {off - base}"])
    SP.L = L
def sp_take(k):
    r = SP.L[:k]; SP.L = SP.L[k:]
    return r
W2V = 1; CPF = 1; CT = 1
CTS = [0, 4, 8, 12, 16, 20, 23, 25, 27, 28, 29]
CT0 = 3
W2S = 12
SPP = 7
SPK = lambda s: 3
SPE = (4, 7)

def prologue(a, name):
    a(f"""
    s_cmp_ge_u32 s2, 256
    s_cbranch_scc1 {name}_end
    s_load_dwordx16 s[64:79], s[0:1], 0
    s_load_dwordx4 s[80:83], s[0:1], 64
    """)
    if CPF:
        a(f"""
        s_getpc_b64 s[16:17]
        """)
        a.label(f"{name}_pc")
        a(f"""
        v_lshrrev_b32 v1, 4, v0
        v_and_b32 v2, 15, v0
        s_lshl_b32 s40, s2, 4
        v_lshlrev_b32 v1, 12, v1
        s_and_b32 s40, s40, 0xf80
        v_lshl_add_u32 v1, v2, 24, v1
        s_and_b32 s17, s17, 0xffff
        s_mov_b32 s18, {name}_last-{name}_pc
        s_mov_b32 s19, 0x20000
        buffer_load_dword v2, v1, s[16:19], s40 offen
        """)
        OPS.append("-")
    a(f"""
    v_lshrrev_b32 v1, 6, v0
    v_and_b32 v{VL}, 63, v0
    s_and_b32 s40, s2, 7
    v_readfirstlane_b32 s20, v1
    s_lshr_b32 s41, s2, 3            ; i
    s_and_b32 s28, s40, 1
    s_lshl_b32 s46, s41, 1
    s_add_u32 s46, s46, s28          ; 2i + (c&1)
    s_lshl_b32 s28, s28, 2
    s_and_b32 s42, s41, 3
    s_add_u32 s28, s28, s42          ; rb
    s_lshr_b32 s43, s40, 1           ; quarter
    s_lshl_b32 s29, s43, 3
    s_lshr_b32 s42, s41, 2
    s_add_u32 s29, s29, s42          ; j
    """)
    if O.diag: a(f"v_mov_b32 v{VST}, 0")
    stamp(a, 0)
    T = VT
    a(f"""
    s_mov_b32 s23, 0
    s_mov_b32 s31, 65536
    s_lshl_b32 s55, s20, 13
    v_lshrrev_b32 v{T}, 3, v{VL}
    v_and_b32 v{T+1}, 7, v{VL}
    v_xor_b32 v{T+1}, v{T+1}, v{T}
    v_lshlrev_b32 v{T}, 11, v{T}
    v_lshl_add_u32 v{T}, v{T+1}, 4, v{T}
    s_lshl_b32 s44, s28, 19
    s_lshl_b32 s45, s20, 17
    s_add_u32 s44, s44, s45
    v_add_u32 v{VD}, s44, v{T}
    """)
    for p in range(1, 4):
        a(f"v_add_u32 v{VD+p}, {p*16384 - 1024*p}, v{VD}")
    a(f"""
    s_mov_b32 s7, 0x20000
    s_mov_b32 s11, 0x20000
    s_mov_b32 s6, {2048*1024*2}
    s_lshl_b32 s47, s46, 2
    s_add_u32 s47, s47, s20
    s_min_u32 s47, s47, 251
    s_mul_i32 s48, s47, 171
    s_lshr_b32 s48, s48, 11          ; u / 12
    s_mul_i32 s49, s48, 12
    s_sub_u32 s49, s47, s49          ; u % 12
    s_mul_i32 s48, s48, 6144
    s_lshr_b32 s50, s49, 2
    s_lshl_b32 s50, s50, 11
    s_add_u32 s48, s48, s50
    s_and_b32 s49, s49, 3
    s_lshl_b32 s50, s43, 2
    s_add_u32 s49, s49, s50
    s_lshl_b32 s49, s49, 7
    s_add_u32 s48, s48, s49
    s_add_u32 s48, s48, 60
    s_mul_i32 s49, s47, 293
    s_lshr_b32 s49, s49, 12          ; u / 14
    s_mul_i32 s50, s49, {7168 - 14*128}
    s_lshl_b32 s49, s47, 7
    s_add_u32 s49, s49, s50
    s_mul_i32 s50, s43, 1792
    s_add_u32 s49, s49, s50
    s_add_u32 s49, s49, 60           ; w1 offset
    s_cmp_ge_u32 s20, 2
    s_cbranch_scc1 {name}_pa2
    s_mov_b32 s10, {1024*3072*2}
    s_cmp_eq_u32 s20, 1
    s_cbranch_scc1 {name}_pa1
    """)
    pf_rows(a, 6144, 12, True)
    a(f"""
    s_waitcnt lgkmcnt(0)
    s_mov_b32 s8, s66
    s_and_b32 s9, s67, 0xffff
    buffer_load_dword v{VPOLL}, v{VPF}, s[8:11], 0 offen
    s_mov_b32 s4, s64
    s_and_b32 s5, s65, 0xffff
    s_branch {name}_pb
    """)
    a.label(f"{name}_pa1")
    xpf(a, 0, X1N)
    a(f"""
    s_waitcnt lgkmcnt(0)
    s_mov_b32 s4, s64
    s_and_b32 s5, s65, 0xffff
    buffer_load_dword v{VPOLL}, v{VPF}, s[4:7], 0 offen
    s_mov_b32 s8, s66
    s_and_b32 s9, s67, 0xffff
    s_branch {name}_pb
    """)
    a.label(f"{name}_pa2")
    a(f"""
    s_mov_b32 s10, {1024*3584*2}
    s_cmp_eq_u32 s20, 3
    s_cbranch_scc1 {name}_pa3
    """)
    if X2M == 2: xpf(a, 2, 2)
    elif X2M == 1:
        a(f"""
        v_and_b32 v{T}, 7, v{VL}
        v_lshlrev_b32 v{T}, 11, v{T}
        v_lshrrev_b32 v{T+1}, 3, v{VL}
        v_lshl_add_u32 v{T}, v{T+1}, 7, v{T}
        s_lshl_b32 s44, s28, 19
        s_lshl_b32 s42, s29, 14
        s_add_u32 s44, s44, s42
        s_add_u32 s44, s44, {128 * XL2[0]}
        v_cmp_gt_u32 vcc, {XL2[1] - XL2[0]}, v{T+1}
        v_add_u32 v{T}, s44, v{T}
        v_mov_b32 v{T+1}, {OOB}
        v_cndmask_b32 v{VPF}, v{T+1}, v{T}, vcc
        """)
    else: a(f"v_mov_b32 v{VPF}, {OOB}")
    a(f"""
    s_waitcnt lgkmcnt(0)
    s_mov_b32 s4, s64
    s_and_b32 s5, s65, 0xffff
    buffer_load_dword v{VPOLL}, v{VPF}, s[4:7], 0 offen
    s_mov_b32 s8, s72
    s_and_b32 s9, s73, 0xffff
    s_branch {name}_pb
    """)
    a.label(f"{name}_pa3")
    pf_rows(a, 7168, 14, False)
    a(f"""
    s_waitcnt lgkmcnt(0)
    s_mov_b32 s8, s72
    s_and_b32 s9, s73, 0xffff
    buffer_load_dword v{VPOLL}, v{VPF}, s[8:11], 0 offen
    s_mov_b32 s4, s64
    s_and_b32 s5, s65, 0xffff
    """)
    a.label(f"{name}_pb")
    OPS.append("-")
    stamp(a, 18)
    for x in dmaX(0, 0): emit(a, x)
    a(f"""
    s_add_u32 s60, s66, s48
    s_addc_u32 s61, s67, 0
    s_add_u32 s94, s72, s49
    s_addc_u32 s95, s73, 0
    """)
    for g in sp_take(SPP):
        for x in g: a(x)
    a(f"""
    s_mov_b32 s24, 0
    s_mov_b32 s50, {SCR}
    s_mov_b32 s51, {SCR}
    s_mov_b32 s52, {SCR}
    s_mov_b32 s53, {SCR}
    v_mov_b32 v{VD+7}, {OOB}
    s_cmp_ge_u32 s20, 2
    s_cbranch_scc1 {name}_ph
    v_lshrrev_b32 v{T}, 2, v{VL}
    v_and_b32 v{T+1}, 3, v{VL}
    v_and_b32 v{T+3}, 3, v{T}
    v_bfe_u32 v{T+4}, v{T}, 2, 1
    v_lshl_add_u32 v{T+3}, v{T+4}, 3, v{T+3}
    v_bfe_u32 v{T+5}, v{T}, 3, 1
    v_lshl_add_u32 v{T+3}, v{T+5}, 2, v{T+3}   ; k low
    v_mul_u32_u24 v{T+3}, 6144, v{T+3}
    v_lshlrev_b32 v{T+4}, 1, v{T+4}
    v_xor_b32 v{T+2}, v{T+1}, v{T+4}
    v_lshl_add_u32 v{T+3}, v{T+2}, 4, v{T+3}
    s_lshl_b32 s42, s29, 6
    s_mul_i32 s44, s20, {16*6144}
    s_add_u32 s42, s42, s44
    v_add_u32 v{VD+4}, s42, v{T+3}
    v_add_u32 v{VD+5}, 1024, v{VD+4}
    v_add_u32 v{VD+6}, 2048, v{VD+4}
    s_mov_b32 s27, {32*6144}
    s_mul_i32 s32, s20, 3072
    s_add_u32 s32, s32, {WB}
    s_branch {name}_pdone
    """)
    a.label(f"{name}_ph")
    a(f"""
    s_lshl_b32 s45, s20, 8
    s_sub_u32 s45, s45, 512
    s_mul_i32 s42, s29, 224
    s_movk_i32 s46, 4682
    """)
    for p in range(4):
        a(f"""
        s_add_u32 s44, s45, {64*p}
        v_add_u32 v{T}, s44, v{VL}
        v_mul_u32_u24 v{T+1}, s46, v{T}
        v_lshrrev_b32 v{T+1}, 16, v{T+1}        ; rho
        v_mul_u32_u24 v{T+2}, 14, v{T+1}
        v_sub_u32 v{T+2}, v{T}, v{T+2}          ; chunk
        v_and_b32 v{T+3}, 0x13, v{T+1}
        v_bfe_u32 v{T+4}, v{T+1}, 2, 1
        v_lshl_add_u32 v{T+3}, v{T+4}, 3, v{T+3}
        v_bfe_u32 v{T+4}, v{T+1}, 3, 1
        v_lshl_add_u32 v{T+3}, v{T+4}, 2, v{T+3}   ; k
        v_mul_u32_u24 v{T+3}, 7168, v{T+3}
        v_lshl_add_u32 v{T+3}, v{T+2}, 4, v{T+3}
        s_sub_u32 s44, s42, {1024*p if p < 3 else 0}
        v_add_u32 v{VD+4+p}, s44, v{T+3}
        """)
        if p == 2:
            a(f"""
            s_mov_b32 s27, {32*7168}
            s_lshl_b32 s32, s20, 12
            s_add_u32 s32, s32, {WB + HO - 8192}
            s_cmp_eq_u32 s20, 3
            s_cbranch_scc1 {name}_pdone
            """)
    for k in range(4): a(f"s_mov_b32 s{50+k}, {WB + HO + 3072 + k*WSL}")
    a.label(f"{name}_pdone")
    a(f"v_lshlrev_b32 v{VL16}, 4, v{VL}")

def nmem(L): return sum(1 for x in L if x.startswith("buffer_"))

GA = 136; GD = 168
def gate_loads(h):
    return [f"buffer_load_dwordx4 {ar(GA+4*h,4)}, v{VL16}, s[84:87], 0 offen offset:{1024*h} ; tag=G{h}",
            f"buffer_load_dwordx4 {ar(GA+8+4*h,4)}, v{VL16}, s[4:7], s49 offen offset:{1024*h} ; tag=G{h}",
            f"buffer_load_dwordx4 {ar(GA+16+4*h,4)}, v{VL16}, s[4:7], s49 offen offset:{2048+1024*h} ; tag=G{h}"]

def gate_stream():
    PK = [228, 240]; ON = VT; g = [232, 233, 227]; t = [244, 245, 246, 247, 248, 234]
    q = []
    for r in range(4): q.append(f"v_mov_b32 v{ON+r}, 0x3f803f80")
    mf = lambda r, first: f"{MFMA} {ar(GD+4*r,4)}, {vr(ON,4)}, {vr(PK[r],4)}, {'0' if first else ar(GD+4*r,4)}"
    for d in range(8):
        q += [f"v_accvgpr_read_b32 v{g[2]}, a{GA+d}", f"v_lshlrev_b32 v{g[0]}, 16, v{g[2]}", f"v_and_b32 v{g[1]}, 0xffff0000, v{g[2]}"]
        if d == 4: q += [mf(0, True), mf(1, True)]
        for r in range(2):
            x, lo, hi = t[3*r:3*r+3]
            q += [f"v_accvgpr_read_b32 v{x}, a{GA+8+8*r+d}", f"v_lshlrev_b32 v{lo}, 16, v{x}", f"v_and_b32 v{hi}, 0xffff0000, v{x}",
                  f"v_mul_f32 v{lo}, v{lo}, v{g[0]}", f"v_mul_f32 v{hi}, v{hi}, v{g[1]}",
                  f"v_cvt_pk_bf16_f32 v{PK[r]+(d&3)}, v{lo}, v{hi}"]
        if d == 3: q.append("#half")
    E = 232; A = 244
    q += ["s_lshl_b32 s48, s48, 2", f"s_add_u32 s48, s48, {G_OFF}", mf(0, False), mf(1, False)]
    q += [f"v_lshrrev_b32 v{A}, 3, v{VL}", f"v_lshlrev_b32 v{A+1}, 7, v{VL}", f"v_mov_b32 v{VZERO}, 0",
          f"v_mov_b32 v{A+2}, {OOB}", f"v_and_b32 v{A+3}, 31, v{VL}", f"v_cmp_eq_u32 vcc, 0, v{A+3}",
          f"v_cmp_gt_u32 s[40:41], 4, v{VL}", f"v_cndmask_b32 v{A}, v{A+2}, v{A}, vcc", f"v_cndmask_b32 v{A+1}, v{A+2}, v{A+1}, s[40:41]",
          f"v_cmp_eq_u32 vcc, 0, v{VL}", f"v_mov_b32 v{VONE}, 1", f"v_cndmask_b32 v{VFL}, v{A+2}, 0, vcc",
          f"buffer_store_dword v{VZERO}, v{A+1}, s[12:15], s57 offen sc1 ; tag=S",
          f"v_and_b32 v{VPA}, 7, v{VL}", f"v_lshlrev_b32 v{VPA}, 5, v{VPA}"]
    q += [f"v_accvgpr_read_b32 v{E}, a{GD}", f"v_accvgpr_read_b32 v{E+1}, a{GD+4}", "s_nop 0",
          f"v_mov_b32_dpp v{E}, v{E+1} quad_perm:[0,1,2,3] row_mask:0xc bank_mask:0xf"]
    for sh in (8, 4, 2, 1):
        q += ["s_nop 0", f"v_add_f32_dpp v{E}, v{E}, v{E} row_ror:{sh} row_mask:0xf bank_mask:0xf"]
    q += lines(f"""
    v_cvt_pk_bf16_f32 v{E}, v{E}, v{E}
    v_lshlrev_b32 v{E}, 16, v{E}
    v_mul_f32 v{E}, 0xbfb8aa3b, v{E}
    v_exp_f32 v{E}, v{E}
    v_add_f32 v{E}, 1.0, v{E}
    v_rcp_f32 v{E}, v{E}
    v_cvt_pk_bf16_f32 v{E}, v{E}, v{E}
    v_lshlrev_b32 v{E}, 16, v{E}
    buffer_store_dword v{E}, v{A}, s[12:15], s48 offen sc1 ; tag=S
    """)
    i = q.index("#half")
    return q[:i], q[i+1:]

GST = (5, 10)
SIG = 17; POLL = 21; CHK = 24
RAMP = {-2: "W0 X0.1", -1: "W1 X1.0 X1.1 W2", 0: "W3 X2.0 X2.1", 1: "W4 G0 W5", 2: "X3.0 X3.1 W6", 3: "W7 X4.0"}
GLD = {7: "G1"}
PW = 6
B0 = 21; B1 = 17
def sched(s):
    if s in RAMP: return RAMP[s].split()
    L = []
    if s + 4 < 32: L.append(f"W{s+4}")
    if (s + 5) >> 1 < 16: L.append(f"X{(s+5)>>1}.{(s+1)&1}")
    if s in GLD: L.append(GLD[s])
    return L
def dma(t):
    if t[0] == "W": return dmaW(int(t[1:]))
    if t[0] == "G": return gate_loads(int(t[1:]))
    D, h = t[1:].split(".")
    return dmaX(int(h), int(D))
def issue(s): return [x for t in sched(s) for x in dma(t)]

def phase1(a, name):
    sp_build()
    print("scalar prefetch loads:", SP.nw, len(SP.L))
    prologue(a, name)
    for x in issue(-2): emit(a, x)
    stamp(a, 19)
    lds_bases(a)
    srd(a, 36, 80, 256)
    srd(a, 84, 76, 2048)
    a(f"""
    s_cmp_eq_u32 s20, 0
    s_cselect_b32 s38, 256, 0
    s_cselect_b32 s33, 32, 0
    s_lshr_b32 s40, s2, 1
    s_lshl_b32 s40, s40, 2
    s_add_u32 s40, s40, s20
    s_and_b32 s41, s40, 255
    s_lshl_b32 s41, s41, 8
    s_lshr_b32 s40, s40, 8
    s_and_b32 s42, s2, 1
    s_lshl_b32 s42, s42, 1
    s_add_u32 s40, s40, s42          ; quarter
    s_lshl_b32 s22, s40, 19
    s_lshl_b32 s42, s41, 3
    s_add_u32 s22, s22, s42
    s_mul_i32 s40, s40, {28*65536}
    s_mul_i32 s21, s41, {28 - W2S}
    s_add_u32 s21, s21, s40
    s_add_u32 s21, s21, {W2S * 65536}
    s_add_u32 s40, s40, s41
    s_add_u32 s40, s40, 60
    s_add_u32 s88, s74, s40
    s_addc_u32 s89, s75, 0
    s_getpc_b64 s[90:91]
    """)
    a.label(f"{name}_pc2")
    a(f"""
    s_lshl_b32 s40, s2, 3
    s_and_b32 s40, s40, 0x3c0
    s_lshl_b32 s41, s20, 10
    s_add_u32 s40, s40, s41
    s_add_u32 s90, s90, s40
    s_addc_u32 s91, s91, 0
    """)
    stamp(a, 1)
    a(f"s_waitcnt vmcnt({PW})")
    for x in issue(-1): emit(a, x)
    stamp(a, 2)
    emit(a, sync(["W0", "X0"], "-", 1))
    stamp(a, 3)
    stamp(a, 4)
    rd = reads1(0)
    for r in rd[:12]: emit(a, r)
    q0, q1 = gate_stream()
    q = []
    T = VT
    lgk = 0
    for s in range(31):
        mem = issue(s)
        ex = []; first = []
        rdpos = RDPOS; mlo = None; mhi = None
        n = nmem(mem)
        if n < 8: mhi = MLO + 5 * n
        if s == 0:
            a("s_waitcnt lgkmcnt(6)")
            for k in range(18): first.append((k // 2, rd[12 + k]))
            for t in range(1, 6):
                issued = min(30, 12 + 8 * t)
                ex.append((4 * t - 1, f"s_waitcnt lgkmcnt({max(0, min(12, issued - (6 + 2 * t)) if t < 5 else 0)})"))
            ex.append((B0, sync(["W1"], 0, 1)))
            rdpos = lambda k: B0 + 1 + (k * (BAR - 3 - B0)) // 30
        if s == 1:
            ex.append((B1, sync(["W2", "X1"], "-", 1)))
            rdpos = lambda k: B1 + 1 + (k * (BAR - 8 - B1)) // 30
        if s == GST[0]: q += q0
        if s == GST[1]: q += q1
        if s == SIG - 1: assert not q and s > GST[1], "gate stream too late"
        if s == SIG:
            q += ["s_lshl_b32 s40, s28, 5", f"buffer_atomic_add v{VONE}, v{VFL}, s[36:39], s40 offen sc1"]
        if s == POLL:
            mem = [f"buffer_load_dword v{VPOLL}, v{VPA}, s[36:39], 0 offen sc1 ; tag=P"] + mem
        if s == CHK:
            ex += [(BAR - 8, f"v_cmp_ne_u32 vcc, s33, v{VPOLL}"), (BAR - 7, "s_lshl_b32 s40, s28, 10"), (BAR - 6, f"s_add_u32 s46, s40, {G_OFF}"),
                   (BAR - 2, f"s_cbranch_vccnz {name}_spin_g"), (BAR - 2, f"{name}_spin_g_ret:")]
        if s == CHK + 1:
            mem = [f"s_mov_b32 m0, {GL}", f"buffer_load_dwordx4 v{VL16}, s[12:15], s46 offen sc1 lds ; tag=g"] + mem
        need = [f"W{s+2}", f"X{(s+2)>>1}"] + [f"G{h}" for h in range(2) if GST[h] == s + 1]
        if s == 0: need = []
        if s == 1: need = ["W3"]
        if s == CHK - 1: need.append("P")
        if s == 29: need.append("g")
        if s == SIG - 1: need.append("S")
        if s == 30:
            stamp(a, 5)
            ex += [(31, f"v_and_b32 v{T}, 15, v{VL}"), (31, f"v_lshlrev_b32 v{T}, 2, v{T}"),
                  (32, "s_lshl_b32 s40, s20, 8"), (33, f"v_add_u32 v{T}, s40, v{T}"), (33, f"v_add_u32 v{T}, {GL}, v{T}")]
            for m in range(4):
                ex.append((37 + m, f"ds_read_b32 v{VG+m}, v{T} offset:{64*m}"))
        d0 = 41 if s == 30 else rdpos(29) + 1
        for i in range(lgk): ex.append((min(d0 + i, BAR - 1), f"ds_read_b32 v{VPF}, v{VXB}"))
        ex.append((BAR, sync(need, lgk, 0 if s == 0 else 1)))
        sp = sp_take(SPK(s))
        for i, g in enumerate(sp):
            for x in g: ex.append((BAR + 1 + i, x))
        lgk = 2 * len(sp)
        if CT and s in CTS:
            ex.append((51, f"s_load_dword s100, s[90:91], @CT{CTS.index(s)}@")); lgk += 1
        a.label(f"{name}_st{s}")
        step1(a, s, rdpos=rdpos, mem=mem, q=q, extra=ex, first=first, mlo=mlo, mhi=mhi)
        if len(SP.L) <= (2 * W2S if O.pf2 else 0) and not getattr(SP, "done", 0): SP.done = 1; print("W stream done at step", s)
    assert not q
    q = kv_stream()
    step1(a, 31, q=q, qlo=0)
    for x in q: a(x)
    stamp(a, 6)
    print("scalar prefetch left after phase 1:", len(SP.L))

def events1(a, name):
    spin(a, name, "g", 36, "0", VPA, "s33", f"{name}_spin_g_ret")

QR = 144; OA = 160; MU = 184; MD = 188; VZ = 192; ONES = 196; VMA = 200; VMB = 201; VTM = 202; VKR = 204; VH32 = 205
KST = 160


def kv_stream():
    T = VT
    q = lines(f"""
    s_lshl_b32 s40, s20, 12
    s_add_u32 s41, s63, s40
    s_add_u32 s42, s40, {KB + 16384}
    v_add_u32 v{T}, s42, v{VL16}
    s_add_u32 s43, s41, 16384
    """)
    for m in range(4):
        q += lines(f"""
        v_sub_f32 v{VOG+m}, 1.0, v{VG+m}
        v_cvt_pk_bf16_f32 v{VOG+m}, v{VOG+m}, v{VOG+m}
        v_lshlrev_b32 v{VOG+m}, 16, v{VOG+m}
        """)
    q.append("@9")
    for m in range(4):
        k0 = acc1(0, m); k1 = acc1(1, m)
        q += lines(f"""
        v_cvt_pk_bf16_f32 v{k0}, v{k0}, v{k0+1}
        v_cvt_pk_bf16_f32 v{k0+1}, v{k0+2}, v{k0+3}
        v_cvt_pk_bf16_f32 v{k0+2}, v{k1}, v{k1+1}
        v_cvt_pk_bf16_f32 v{k0+3}, v{k1+2}, v{k1+3}
        buffer_store_dwordx4 {vr(k0,4)}, v{VL16}, s[12:15], s41 offen offset:{1024*m} sc1
        ds_write_b128 v{T}, {vr(k0,4)} offset:{1024*m}
        """)
    for p in range(2):
        for dt in range(2):
            r = acc1(2 + dt, 2 * p)
            q += lines(f"""
            v_cvt_pk_bf16_f32 v{r}, v{r}, v{r+1}
            v_cvt_pk_bf16_f32 v{r+1}, v{r+2}, v{r+3}
            v_cvt_pk_bf16_f32 v{r+2}, v{r+4}, v{r+5}
            v_cvt_pk_bf16_f32 v{r+3}, v{r+6}, v{r+7}
            buffer_store_dwordx4 {vr(r,4)}, v{VL16}, s[12:15], s43 offen offset:{1024*(2*p+dt)} sc1
            ds_write_b128 v{T}, {vr(r,4)} offset:{32768 + 1024*(2*p+dt)}
            """)
    q += lines(f"""
    v_lshrrev_b32 v{T+1}, 5, v{VL}
    v_mul_u32_u24 v{T+1}, {MT_STRIDE}, v{T+1}
    v_and_b32 v{T+2}, 31, v{VL}
    v_lshl_add_u32 v{VH}, v{T+2}, 4, v{T+1}
    s_lshl_b32 s44, s28, 4
    s_lshl_b32 s45, s20, 2
    s_add_u32 s44, s44, s45
    s_mul_i32 s44, s44, {MT_STRIDE}
    s_mul_i32 s45, s29, 7
    v_cmp_eq_u32 vcc, 0, v{VL}
    v_mov_b32 v{VONE}, 1
    v_mov_b32 v{VZERO}, 0
    v_mov_b32 v{VFL}, 0x40000000
    v_cndmask_b32 v{VFL}, v{VFL}, 0, vcc
    """)
    q += h_valu(0)
    return q

def h_valu(t):
    q = []
    for p in range(2):
        r = acc1(6 + t, 2 * p)
        for h in range(2):
            for k in range(4):
                q.append(f"v_mul_f32 v{r+4*h+k}, v{r+4*h+k}, v{VOG+2*p+h}")
        for k in range(4):
            q.append(f"v_cvt_pk_bf16_f32 v{r+k}, v{r+2*k}, v{r+2*k+1}")
        for k in range(4):
            q.append(f"v_pk_max_i16 v{r+k}, v{r+k}, 0")
    for p in range(2):
        r = acc1(6 + t, 2 * p)
        q.append(f"v_permlane32_swap_b32 v{r}, v{r+2}")
        q.append(f"v_permlane32_swap_b32 v{r+1}, v{r+3}")
    return q

def h_addr(t):
    return lines(f"""
        s_add_u32 s46, s45, {t}           ; T
        s_mul_i32 s48, s46, 1171
        s_lshr_b32 s48, s48, 16           ; T/56
        s_lshl_b32 s48, s48, 4
        s_add_u32 s46, s46, s48           ; T + 16*(T/56)
        s_lshl_b32 s46, s46, 9
        s_add_u32 s46, s46, s44
        s_add_u32 s48, s46, {2*MT_STRIDE}
        """)
def h_store(t, p, agpr=None):
    r = acc1(6 + t, 2 * p)
    src = vr(r, 4) if agpr is None else ar(agpr, 4)
    return f"buffer_store_dwordx4 {src}, v{VH}, s[12:15], s{46+2*p} offen sc1"
HA = 2; HB = 4
def h_late():
    q = []
    for t in range(HB, 7):
        q += h_addr(t) + [h_store(t, p, 8 * t + 4 * p) for p in range(2)]
    return q

def spe(a, i):
    for g in sp_take(SPE[i]):
        for x in g: a(x)
def w2vec():
    if not O.pf2: return []
    return lines(f"""
    v_lshlrev_b32 v207, 7, v{VL}
    v_cmp_gt_u32 vcc, {2 * (28 - W2S)}, v{VL}
    v_mov_b32 v205, {OOB}
    s_mov_b32 s16, s68
    v_cndmask_b32 v206, v205, v207, vcc
    v_cmp_gt_u32 vcc, 16, v{VL}
    s_and_b32 s17, s69, 0xffff
    s_mov_b32 s18, {1024*2048}
    v_cndmask_b32 v207, v205, v207, vcc
    buffer_load_dword v205, v206, s[8:11], s21 offen
    buffer_load_dword v205, v207, s[16:19], s22 offen
    """)

def epilogue1(a, name):
    T = VT
    for t in (1, 2):
        for x in h_valu(t): a(x)
    srd(a, 16, 82, WS_USED)
    a(f"""
    s_sub_u32 s49, s57, {2048 - 256}
    s_cmp_eq_u32 s28, 0
    s_cselect_b32 s18, 0, s18
    s_cselect_b32 s91, {hex(NEG)}, 0
    s_cselect_b32 s49, s57, s49
    s_cselect_b32 s50, 0, 1
    """)
    spe(a, 0)
    a(f"""
    s_waitcnt vmcnt(0)
    buffer_store_dword v{VONE}, v{VFL}, s[12:15], s57 offen offset:256 sc1
    """)
    stamp(a, 7)
    for t in range(HA):
        for x in h_addr(t) + [h_store(t, 0), h_store(t, 1)]: a(x)
        for x in h_valu(3 + t): a(x)
    for t in range(3 + HA, 5):
        for x in h_valu(t): a(x)
    a(f"buffer_load_dword v{VPOLL}, v{VZERO}, s[12:15], s49 offen sc1")
    for t in (5, 6):
        for x in h_valu(t): a(x)
    for t in range(HB, 7):
        for p in range(2):
            for k in range(4): a(f"v_accvgpr_write_b32 a{8*t+4*p+k}, v{acc1(6+t, 2*p)+k}")
    a(f"""
    s_lshl_b32 s40, s20, 12
    s_add_u32 m0, s40, {KB}
    s_add_u32 s41, s63, s40
    s_sub_u32 s41, s41, {32*32768}
    """)
    spe(a, 1)
    a(f"""
    s_waitcnt vmcnt(0)
    v_cmp_ne_u32 vcc, s50, v{VPOLL}
    s_nop 4
    s_cbranch_vccnz {name}_spin_kv
    """)
    a.label(f"{name}_spin_kv_ret")
    stamp(a, 8)
    for p in range(4):
        a(f"buffer_load_dwordx4 v{VL16}, s[16:19], s41 offen offset:{1024*p} sc1 lds")
    a(f"s_add_u32 m0, s40, {VB}")
    a("s_add_u32 s41, s41, 16384")
    for p in range(4):
        a(f"buffer_load_dwordx4 v{VL16}, s[16:19], s41 offen offset:{1024*p} sc1 lds")
    for t in range(HA, HB):
        for x in h_addr(t) + [h_store(t, 0), h_store(t, 1)]: a(x)
    attn_setup(a)
    for (_, x) in p2_setup_fill(): a(x)
    a(f"s_waitcnt vmcnt({2*(HB-HA)}) lgkmcnt(0)")
    a("s_barrier")
    stamp(a, 9)

def attn_setup(a):
    T = VT
    for m in range(4):
        q0 = acc1(4, m); q1 = acc1(5, m); d = QR + 4 * m
        a(f"""
        v_cvt_pk_bf16_f32 v{d}, v{q0}, v{q0+1}
        v_cvt_pk_bf16_f32 v{d+1}, v{q0+2}, v{q0+3}
        v_cvt_pk_bf16_f32 v{d+2}, v{q1}, v{q1+1}
        v_cvt_pk_bf16_f32 v{d+3}, v{q1+2}, v{q1+3}
        """)
    a(f"""
    v_and_b32 v{T+2}, 15, v{VL}
    v_lshrrev_b32 v{T+3}, 4, v{VL}
    v_lshlrev_b32 v{T+3}, 2, v{T+3}
    v_sub_u32 v{T+2}, v{T+2}, v{T+3}     ; q - 4g
    v_mov_b32 v{T+3}, {hex(NEG)}
    v_mov_b32 v{T+4}, s91
    """)
    for r in range(4):
        a(f"""
        v_cmp_gt_i32 vcc, {r}, v{T+2}
        v_cndmask_b32 v{MU+r}, v{T+3}, v{T+4}, vcc
        v_cndmask_b32 v{MD+r}, 0, v{T+3}, vcc
        v_mov_b32 v{ONES+r}, 0x3f803f80
        """)
    a(f"""
    s_lshl_b32 s40, s20, 12
    s_add_u32 s40, s40, {KB}
    v_add_u32 v{VKR}, s40, v{VL16}
    s_mov_b32 s90, {hex(f2u(CSC))}
    s_lshl_b32 s92, s20, 2
    s_sub_u32 s92, 16, s92
    s_cmp_eq_u32 s28, 0
    s_cselect_b32 s92, s92, 99
    """)

def attn_unit(a, name, u, ool, mid=None, side=None, head=None, pre_store=()):
    QA = vr(QR + 8 * u, 4); QB = vr(QR + 8 * u + 4, 4)
    SA = lambda k: 8 * k
    SB = lambda k: 8 * k + 4
    kreg = lambda k: KST + 4 * k
    rdk = lambda k: f"ds_read_b128 {ar(kreg(k),4)}, v{VKR} offset:{(2*u + k)*1024}"
    rdv = lambda k: f"ds_read_b128 {ar(kreg(k),4)}, v{VKR} offset:{32768 + (2*u + k)*1024}"
    for r in range(4): a(f"v_mov_b32 v{VZ+r}, s91")
    for k in range(6): a(rdk(k))
    pend = []
    first = {0: True, 1: True}
    def maxops(which, s):
        m = VMA + which
        if first[which]:
            first[which] = False
            return [f"v_max3_f32 v{m}, v{s}, v{s+1}, v{s+2}", f"v_max_f32 v{m}, v{m}, v{s+3}"]
        return [f"v_max3_f32 v{m}, v{m}, v{s}, v{s+1}", f"v_max3_f32 v{m}, v{m}, v{s+2}, v{s+3}"]
    lg = 6
    for k in range(18):
        if k + 6 < 18:
            a(rdk(k + 6)); lg += 1
        elif k >= 14:
            a(rdv(k - 14)); lg += 1
        lg -= 1
        a(f"s_waitcnt lgkmcnt({lg})")
        if 2 <= k <= 14 and k % 2 == 0:
            a(f"s_cmp_eq_u32 s92, {k}")
            a(f"s_cbranch_scc1 {name}_zf_{u}_{k}")
            a.label(f"{name}_zfr_{u}_{k}")
            ool.append((f"{name}_zf_{u}_{k}", f"{name}_zfr_{u}_{k}"))
        K = ar(kreg(k), 4)
        if k <= 16:
            C = vr(MU, 4) if k == 0 else (vr(MD, 4) if k == 16 else vr(VZ, 4))
            a(f"{MFMA} {vr(SA(k),4)}, {K}, {QA}, {C}")
            for x in pend[:2]: a(x)
            pend = pend[2:]
        if k >= 1:
            C = vr(MU, 4) if k == 1 else (vr(MD, 4) if k == 17 else ("0" if k == 16 else vr(VZ, 4)))
            a(f"{MFMA} {vr(SB(k),4)}, {K}, {QB}, {C}")
            for x in pend[:2]: a(x)
            pend = pend[2:]
        if k >= 2:
            kk = k - 2
            if kk <= 16: pend += maxops(0, SA(kk))
            if kk >= 1: pend += maxops(1, SB(kk))
    for kk in (16, 17):
        if kk <= 16: pend += maxops(0, SA(kk))
        pend += maxops(1, SB(kk))
    a(rdv(4)); a(rdv(5)); lg += 2
    for x in pend: a(x)
    a(f"""
    v_mov_b32 v{VTM}, v{VMA}
    v_mov_b32 v{VTM+1}, v{VMB}
    v_permlane32_swap_b32 v{VMA}, v{VTM}
    v_permlane32_swap_b32 v{VMB}, v{VTM+1}
    v_max_f32 v{VMA}, v{VMA}, v{VTM}
    v_max_f32 v{VMB}, v{VMB}, v{VTM+1}
    v_mov_b32 v{VTM}, v{VMA}
    v_mov_b32 v{VTM+1}, v{VMB}
    v_permlane16_swap_b32 v{VMA}, v{VTM}
    v_permlane16_swap_b32 v{VMB}, v{VTM+1}
    v_max_f32 v{VMA}, v{VMA}, v{VTM}
    v_max_f32 v{VMB}, v{VMB}, v{VTM+1}
    v_mul_f32 v{VMA}, s90, v{VMA}
    v_mul_f32 v{VMB}, s90, v{VMB}
    s_sub_u32 s92, s92, 2
    """)
    if mid: mid()
    def pvm(p):
        out = []
        PA = vr(16 * p, 4); PB = vr(16 * p + 4, 4)
        for (P, o) in ((PA, OA), (PB, OA + 12)):
            for dt in range(2):
                D = vr(o + 4 * dt, 4)
                out.append(f"{MFMA} {D}, {ar(kreg(2*p+dt),4)}, {P}, {'0' if p == 0 else D}")
            D = vr(o + 8, 4)
            out.append(f"{MFMA} {D}, {vr(ONES,4)}, {P}, {'0' if p == 0 else D}")
        return out
    vnext = 6
    for p in range(10):
        va = []
        if p < 9:
            b = 16 * p
            live = [r for r in range(16) if not (p == 0 and 4 <= r < 8) and not (p == 8 and 8 <= r < 12)]
            for r in live:
                m = VMA if (r & 4) == 0 else VMB
                va.append(f"v_fma_f32 v{b+r}, v{b+r}, s90, -v{m}")
            for r in live:
                va.append(f"v_exp_f32 v{b+r}, v{b+r}")
            for (d, s) in ((0, 0), (1, 2), (2, 8), (3, 10), (4, 4), (5, 6), (6, 12), (7, 14)):
                if s in live: va.append(f"v_cvt_pk_bf16_f32 v{b+d}, v{b+s}, v{b+s+1}")
                else: va.append(f"v_mov_b32 v{b+d}, 0")
        if head and p in head: head[p]()
        if side and p in side:
            sd = side[p]; st_ = max(1, len(va) // (len(sd) + 1)); nv = []
            for k, x in enumerate(va):
                nv.append(x)
                if (k + 1) % st_ == 0 and sd: nv.append(sd.pop(0))
            va = nv + sd
        mm = []
        if p >= 1:
            lg -= 2
            a(f"s_waitcnt lgkmcnt({lg})")
            mm = pvm(p - 1)
        if vnext < 18:
            a(rdv(vnext)); a(rdv(vnext + 1)); vnext += 2; lg += 2
        n = len(va)
        step = max(1, n // 6) if mm else n
        i = 0
        for k, x in enumerate(va):
            if mm and k % step == 2 % step and i < len(mm):
                a(mm[i]); i += 1
            a(x)
        while i < len(mm):
            a(mm[i]); i += 1
    T = VT
    a(f"""
    v_rcp_f32 v{VTM}, v{OA+8}
    v_rcp_f32 v{VTM+1}, v{OA+20}
    v_mul_f32 v{VTM}, v{VTM}, v{VG+2*u}
    v_mul_f32 v{VTM+1}, v{VTM+1}, v{VG+2*u+1}
    """)
    for r in range(8):
        a(f"v_mul_f32 v{OA+r}, v{OA+r}, v{VTM}")
        a(f"v_mul_f32 v{OA+12+r}, v{OA+12+r}, v{VTM+1}")
    for x in pre_store: a(x)
    for dt in range(2):
        d = T + 4 + 4 * dt
        a(f"""
        v_cvt_pk_bf16_f32 v{d}, v{OA+4*dt}, v{OA+4*dt+1}
        v_cvt_pk_bf16_f32 v{d+1}, v{OA+4*dt+2}, v{OA+4*dt+3}
        v_cvt_pk_bf16_f32 v{d+2}, v{OA+12+4*dt}, v{OA+12+4*dt+1}
        v_cvt_pk_bf16_f32 v{d+3}, v{OA+12+4*dt+2}, v{OA+12+4*dt+3}
        v_permlane32_swap_b32 v{d}, v{d+2}
        v_permlane32_swap_b32 v{d+1}, v{d+3}
        buffer_store_dwordx4 {vr(d,4)}, v{VH}, s[12:15], s56 offen offset:{512*dt} sc1
        """)
    a(f"s_add_u32 s56, s56, {2*MT_STRIDE}")

def attention(a, name, ool):
    a(f"""
    s_lshr_b32 s40, s29, 3
    s_mul_i32 s40, s40, 36
    s_and_b32 s41, s29, 7
    s_add_u32 s40, s40, s41
    s_add_u32 s40, s40, 28
    s_lshl_b32 s40, s40, 10
    s_add_u32 s56, s40, s44
    """)
    def chunks(L, ps):
        n = len(ps); per = (len(L) + n - 1) // n
        return {p: L[i*per:(i+1)*per] for i, p in enumerate(ps)}
    assert not SP.L, len(SP.L)
    wd = [x for s_ in range(R2) for g in w2_dma(s_) for x in g]
    if W2V == 0: wd = w2vec() + wd
    if W2V == 1: wd = wd + w2vec()
    hf = lines(f"""
    s_waitcnt vmcnt({nmem(wd)})
    buffer_store_dword v{VONE}, v{VFL}, s[12:15], s57 offen sc1
    """)
    sd = chunks(h_late(), range(0, 3)); sd.update(chunks(wd, range(3, 9)))
    attn_unit(a, name, 0, ool, side=sd, pre_store=hf)
    stamp(a, 10)
    if W2V == 2:
        for x in w2vec(): a(x)
    if O.stop != 'p1':
        al = []
        for s_ in range(R2):
            al += [a2_ld(s_, m) for m in range(4)] + ["s_add_u32 s84, s84, 1024"]
        attn_unit(a, name, 1, ool, mid=lambda: p2_poll_h(a), head={5: lambda: p2_check_h(a, name)}, side=chunks(al, range(5, 9)))
    else:
        attn_unit(a, name, 1, ool)
    stamp(a, 11)

VA2 = 209; VW2 = 213; VR2 = 217
R2 = 6
AR2 = 0; WF2 = 96
def acc2(n, m): return (n * 4 + m) * 4

def p2_setup_fill():
    T = VT
    txt = f"""
    s_and_b32 s40, s2, 7
    s_lshr_b32 s41, s2, 3
    s_and_b32 s62, s40, 1            ; kh
    s_lshr_b32 s60, s40, 1
    s_lshl_b32 s60, s60, 2
    s_and_b32 s42, s41, 3
    s_add_u32 s60, s60, s42          ; mt
    s_lshr_b32 s61, s41, 2           ; nt
    s_and_b32 s88, s20, 1            ; wm
    s_lshr_b32 s89, s20, 1           ; wk
    s_lshl_b32 s42, s62, 1
    s_add_u32 s42, s42, s89          ; quarter
    s_lshl_b32 s84, s60, 3
    s_lshl_b32 s43, s88, 2
    s_add_u32 s84, s84, s43
    s_mul_i32 s84, s84, 144
    s_mul_i32 s43, s42, 36
    s_add_u32 s84, s84, s43
    s_lshl_b32 s84, s84, 10          ; A soffset
    s_mul_i32 s85, s42, {28*32*2048} ; W2 soffset
    s_mul_i32 s86, s42, {8*32*2048}
    s_mul_i32 s87, s89, {R2*8192}
    s_lshl_b32 s43, s88, 12
    s_add_u32 s94, s87, s43          ; M0 base
    v_mov_b32 v{VA2}, v{VL16}
    v_add_u32 v{VA2+1}, {MT_STRIDE}, v{VL16}
    v_add_u32 v{VA2+2}, {2*MT_STRIDE}, v{VL16}
    v_add_u32 v{VA2+3}, {3*MT_STRIDE}, v{VL16}
    v_lshrrev_b32 v{T}, 4, v{VL}
    v_and_b32 v{T+1}, 15, v{VL}
    v_lshlrev_b32 v{T+2}, 1, v{T}
    v_xor_b32 v{T+1}, v{T+1}, v{T+2}
    v_lshlrev_b32 v{T}, 11, v{T}
    v_lshl_add_u32 v{T}, v{T+1}, 4, v{T}
    s_lshl_b32 s43, s88, 15
    s_lshl_b32 s42, s61, 8
    s_add_u32 s43, s43, s42
    v_add_u32 v{VW2}, s43, v{T}
    v_xor_b32 v{T}, 128, v{VW2}
    v_add_u32 v{VW2+1}, {4*2048-1024}, v{T}
    v_add_u32 v{VW2+2}, {8*2048-2048}, v{VW2}
    v_add_u32 v{VW2+3}, {12*2048-3072}, v{T}
    v_bfe_u32 v{T}, v{VL}, 2, 2
    v_bfe_u32 v{T+1}, v{VL}, 4, 1
    v_lshl_add_u32 v{T}, v{T+1}, 2, v{T}     ; row&7
    v_mul_u32_u24 v{T}, 288, v{T}
    v_lshrrev_b32 v{T+1}, 5, v{VL}
    v_lshl_add_u32 v{T}, v{T+1}, 12, v{T}
    v_and_b32 v{T+1}, 3, v{VL}
    v_lshl_add_u32 v{T}, v{T+1}, 3, v{T}
    v_add_u32 v{VR2}, s87, v{T}
    """
    L = [l.strip() for l in txt.strip().split("\n")]
    for n in range(1, 8):
        L.append(f"v_xor_b32 v{VR2+n}, {32*n}, v{VR2}")
    L += [f"s_mov_b32 s8, s74", "s_and_b32 s9, s75, 0xffff", f"s_mov_b32 s10, {3584*2048}",
          "s_mov_b32 s4, s82", "s_and_b32 s5, s83, 0xffff", f"s_mov_b32 s6, {KV_OFF}", "s_and_b32 s69, s69, 0xffff"]
    return [(2 + i // 2, l) for i, l in enumerate(L)]

def w2_dma(slot):
    g = [[f"s_add_u32 m0, s94, {slot*8192}", f"buffer_load_dwordx4 v{VW2}, s[8:11], s85 offen lds"]]
    for p in range(1, 4):
        g.append([f"buffer_load_dwordx4 v{VW2+p}, s[8:11], s85 offen offset:{1024*p} lds"])
    g[-1].append(f"s_add_u32 s85, s85, {32*2048}")
    return g

def a2_ld(slot, m):
    return f"buffer_load_dwordx4 {ar(AR2+16*slot+4*m,4)}, v{VA2+m}, s[4:7], s84 offen sc1"

def p2_poll_h(a):
    a(f"""
    v_and_b32 v{VPA}, 7, v{VL}
    v_lshlrev_b32 v{VPA}, 2, v{VPA}
    s_lshl_b32 s95, s60, 1
    s_add_u32 s95, s95, s88
    s_lshl_b32 s95, s95, 9
    s_lshl_b32 s40, s62, 1
    s_add_u32 s40, s40, s89
    s_lshl_b32 s40, s40, 5
    s_add_u32 s95, s95, s40
    s_add_u32 s95, s95, {FL_OFF}
    buffer_load_dword v{VPOLL}, v{VPA}, s[12:15], s95 offen sc1
    """)

def p2_check_h(a, name):
    a(f"""
    s_waitcnt vmcnt(0)
    v_cmp_ne_u32 vcc, 1, v{VPOLL}
    s_nop 4
    s_cbranch_vccnz {name}_spin_h
    """)
    a.label(f"{name}_spin_h_ret")

def reads2(st, slot):
    return [f"ds_read_b64_tr_b16 {ar(WF2+32*st+4*n+2*t,2)}, v{VR2+n} offset:{slot*8192 + t*2048}" for n in range(8) for t in range(2)]

def phase2(a, name):
    T = VT
    a("s_waitcnt vmcnt(26)")
    a("s_barrier")
    for r in reads2(0, 0): a(r)
    for r in range(128): a(f"v_mov_b32 v{r}, 0")
    a(f"s_mov_b32 s30, 0")
    a(f"s_add_u32 s95, s95, 128")
    a("s_waitcnt vmcnt(14) lgkmcnt(0)")
    a("s_barrier")
    stamp(a, 12)
    a.raw(".p2align 6")
    a.label(f"{name}_loop2")
    for pos in range(R2):
        st = pos & 1
        if pos in (4, 5):
            a(f"s_cmp_lt_u32 s30, 4")
            a(f"s_cbranch_scc1 {name}_ev2_{pos}")
            a.label(f"{name}_ev2r_{pos}")
        mf = []
        for m in range(4):
            for n in range(8):
                D = vr(acc2(n, m), 4)
                mf.append(f"{MFMA} {D}, {ar(WF2+32*st+4*n,4)}, {ar(AR2+16*pos+4*m,4)}, {D}")
        fill = [[] for _ in mf]
        for i, r in enumerate(reads2(st ^ 1, (pos + 1) % R2)): fill[i].append(r)
        g = w2_dma(pos)
        fill[1].append(g[0][0]); fill[2].append(g[0][1])
        fill[10] += g[1]; fill[18] += g[2]; fill[25] += g[3]
        for m in range(3): fill[8 * m + 7 + (0 if m else 0)].append(a2_ld(pos, m))
        fill[31].append(a2_ld(pos, 3))
        fill[28].append("s_waitcnt vmcnt(32) lgkmcnt(0)")
        fill[28].append("s_barrier")
        if pos == R2 - 1:
            fill[29] += ["s_add_u32 s30, s30, 1", "s_cmp_lt_u32 s30, 5"]
            fill[30] += ["s_cselect_b32 s10, s10, 0"]
            fill[31] += ["s_cselect_b32 s6, s6, 0", "s_add_u32 s84, s84, 1024", "s_cmp_lt_u32 s30, 6"]
        else:
            fill[31].append("s_add_u32 s84, s84, 1024")
        emit_gaps(a, mf, fill)
    a(f"s_cbranch_scc1 {name}_loop2")
    stamp(a, 13)
    final2(a, name)

def events2(a, name):
    T = VT
    a.label(f"{name}_ev2_4")
    a(f"""
    s_cmp_eq_u32 s30, 3
    s_cbranch_scc0 {name}_ev2r_4
    v_cmp_ne_u32 vcc, 1, v{VPOLL}
    s_mov_b32 s8, s68
    s_mov_b32 s9, s69
    s_mov_b32 s10, {1024*2048}
    s_mov_b32 s85, s86
    s_nop 1
    s_cbranch_vccnz {name}_spin_o
    s_branch {name}_ev2r_4
    """)
    a.label(f"{name}_ev2_5")
    a(f"""
    s_cmp_eq_u32 s30, 2
    s_cbranch_scc1 {name}_ev2_5b
    s_cmp_eq_u32 s30, 0
    s_cbranch_scc0 {name}_ev2r_5
    buffer_store_dword v{VONE}, v{VFL}, s[12:15], s57 offen offset:128 sc1
    s_branch {name}_ev2r_5
    """)
    a.label(f"{name}_ev2_5b")
    a(f"""
    buffer_load_dword v{VPOLL}, v{VPA}, s[12:15], s95 offen sc1
    s_branch {name}_ev2r_5
    """)
    spin(a, name, "h", 12, "s95", VPA, 1, f"{name}_spin_h_ret")
    spin(a, name, "o", 12, "s95", VPA, 1, f"{name}_ev2r_4")
    spin(a, name, "p", 12, "s46", VZERO, 1, f"{name}_spin_p_ret")

def final2(a, name):
    T = VT
    RED = KB
    a(f"""
    s_xor_b32 s40, s20, 2
    s_lshl_b32 s40, s40, 14
    s_add_u32 s40, s40, {RED}
    v_add_u32 v{T}, s40, v{VL16}
    s_lshl_b32 s40, s20, 14
    s_add_u32 s40, s40, {RED}
    v_add_u32 v{T+2}, s40, v{VL16}
    s_cmp_eq_u32 s89, 0
    s_cbranch_scc1 {name}_red0
    """)
    for q in range(16): a(f"ds_write_b128 v{T}, {vr(4*q,4)} offset:{1024*q}")
    a("s_nop 1")
    for r in range(64): a(f"v_mov_b32 v{r}, v{64+r}")
    a(f"s_branch {name}_red1")
    a.label(f"{name}_red0")
    for q in range(16): a(f"ds_write_b128 v{T}, {vr(64+4*q,4)} offset:{1024*q}")
    a.label(f"{name}_red1")
    a("s_waitcnt lgkmcnt(0)")
    a("s_barrier")
    for q in range(16): a(f"ds_read_b128 {vr(64+4*q,4)}, v{T+2} offset:{1024*q}")
    a(f"""
    s_lshl_b32 s40, s2, 2
    s_add_u32 s40, s40, s20
    s_lshl_b32 s41, s40, 13
    s_add_u32 s41, s41, {PX_OFF}
    s_xor_b32 s42, s40, 4
    s_lshl_b32 s43, s42, 13
    s_add_u32 s43, s43, {PX_OFF}
    s_add_u32 s45, s57, 384
    s_xor_b32 s46, s45, 8192
    s_add_u32 s47, s41, 4096
    s_add_u32 s48, s43, 4096
    """)
    for q in range(16):
        if q % 4 == 0: a(f"s_waitcnt lgkmcnt({12 - q})")
        for r in range(4): a(f"v_add_f32 v{4*q+r}, v{4*q+r}, v{64+4*q+r}")
    stamp(a, 14)
    a(f"s_cmp_eq_u32 s62, 0")
    a(f"s_cbranch_scc1 {name}_x0")
    for n in range(4):
        for h in range(2):
            i = 2 * n + h
            a(f"buffer_store_dwordx4 {vr(16*n+4*h,4)}, v{VL16}, s[12:15], s{41 if i < 4 else 47} offen offset:{1024*(i%4)} sc1")
    a("s_nop 1")
    for n in range(4):
        for r in range(8): a(f"v_mov_b32 v{16*n+r}, v{16*n+8+r}")
    a(f"s_branch {name}_x1")
    a.label(f"{name}_x0")
    for n in range(4):
        for h in range(2):
            i = 2 * n + h
            a(f"buffer_store_dwordx4 {vr(16*n+8+4*h,4)}, v{VL16}, s[12:15], s{41 if i < 4 else 47} offen offset:{1024*(i%4)} sc1")
    a.label(f"{name}_x1")
    a(f"""
    s_waitcnt vmcnt(0)
    buffer_store_dword v{VONE}, v{VFL}, s[12:15], s45 offen sc1
    """)
    stamp(a, 15)
    srd(a, 16, 78, 2048*1024*2)
    a(f"""
    v_and_b32 v{T+2}, 15, v{VL}
    v_lshlrev_b32 v{T+2}, 11, v{T+2}
    v_bfe_u32 v{T+3}, v{VL}, 4, 1
    v_lshl_add_u32 v{T+2}, v{T+3}, 5, v{T+2}
    v_lshrrev_b32 v{T+3}, 5, v{VL}
    v_lshl_add_u32 v{T+2}, v{T+3}, 4, v{T+2}
    s_lshl_b32 s40, s60, 2
    s_lshl_b32 s41, s88, 1
    s_add_u32 s40, s40, s41
    s_add_u32 s40, s40, s62
    s_lshl_b32 s40, s40, 16
    s_lshl_b32 s41, s61, 8
    s_add_u32 s40, s40, s41
    s_lshl_b32 s41, s89, 7
    s_add_u32 s40, s40, s41
    s_add_u32 s41, s40, {16*2048}
    s_branch {name}_spin_p
    """)
    a.label(f"{name}_spin_p_ret")
    stamp(a, 16)
    for n in range(4):
        for h in range(2):
            i = 2 * n + h
            a(f"buffer_load_dwordx4 {vr(64+4*i,4)}, v{VL16}, s[12:15], s{43 if i < 4 else 48} offen offset:{1024*(i%4)} sc1")
    for np_ in range(2):
        a(f"s_waitcnt vmcnt({4 if np_ == 0 else 2})")
        for h in range(2):
            d = 96 + 8 * np_ + 4 * h
            for k in range(2):
                n = 2 * np_ + k
                r = 16 * n + 4 * h; s = 64 + 4 * (2 * n + h)
                for q in range(4): a(f"v_add_f32 v{r+q}, v{r+q}, v{s+q}")
                a(f"v_cvt_pk_bf16_f32 v{d+2*k}, v{r}, v{r+1}")
                a(f"v_cvt_pk_bf16_f32 v{d+2*k+1}, v{r+2}, v{r+3}")
            a(f"v_permlane16_swap_b32 v{d}, v{d+2}")
            a(f"v_permlane16_swap_b32 v{d+1}, v{d+3}")
            a(f"buffer_store_dwordx4 {vr(d,4)}, v{T+2}, s[16:19], s{40+h} offen offset:{64*np_}")
    if O.diag:
        a("s_waitcnt vmcnt(0)")
    stamp(a, 17)

def build():
    name = "fused_kernel"
    HDR = open("gated_mix__sliding_block__dense_activation_relu__prompt.s.ref").read().split("; Override launch")[0]
    a = Asm()
    kernel_begin(a, name)
    ool = []
    phase1(a, name)
    epilogue1(a, name)
    attention(a, name, ool)
    if O.stop != 'p1':
        phase2(a, name)
    dump(a)
    a.label(f"{name}_end")
    a("s_endpgm")
    events1(a, name)
    spin(a, name, "kv", 12, "s49", VZERO, "s50", f"{name}_spin_kv_ret")
    if O.stop != 'p1':
        events2(a, name)
    for (l, r) in ool:
        a.label(l)
        a("s_nop 3")
        for q in range(4): a(f"v_mov_b32 v{VZ+q}, 0")
        a("s_nop 1")
        a(f"s_branch {r}")
    a.label(f"{name}_last")
    body = hazard.fix(a.lines, verbose=True)
    h = Asm()
    h.raw(HDR.rstrip("\n"))
    h.raw(f"; @launch kernel={name} grid=(256,1,1) block=(256,1,1) lds=163840")
    h.raw('.amdgcn_target "amdgcn-amd-amdhsa--gfx950"')
    h.lines += body
    kernel_desc(h, name, 512, 256)
    txt = h.text()
    if "@CT0@" in txt:
        import re, subprocess
        open("p1.s", "w").write(re.sub(r"@CT\d+@", "0", txt))
        subprocess.run(["clang", "-x", "assembler", "-target", "amdgcn-amd-amdhsa", "-mcpu=gfx950", "-c", "p1.s", "-o", "p1.o"], check=True)
        sym = {}
        for l in subprocess.run(["llvm-nm", "p1.o"], capture_output=True, text=True).stdout.split("\n"):
            p = l.split()
            if len(p) == 3: sym[p[2]] = int(p[0], 16)
        base = sym[f"{name}_pc2"]; end = sym[f"{name}_last"]
        o = (sym[f"{name}_st{CT0}"] - base) & ~63
        for i in range(len(CTS)):
            off = min(o + 4096 * i, (end - base - 4096) & ~3)
            txt = txt.replace(f"@CT{i}@", str(off))
        print("code", end, "touch windows from", o + base, "to", off + base + 4096, "steps at", [sym[f"{name}_st{s}"] for s in CTS])
    return txt

if __name__ == "__main__":
    for x in sys.argv[2:]:
        if x == "diag": O.diag = True
        if x == "p1": O.stop = 'p1'
        if x == "nopf": O.pf2 = False
        if x == "nopf1": O.pf1 = False
        if "=" in x: exec(x, globals())
    open(sys.argv[1], "w").write(build())
```
